```python
import torch

def _softmax(x, axis=-1):
    return torch.softmax(x, dim=axis)
def _gelu(x):
    return torch.nn.functional.gelu(x, approximate="tanh")
def _silu(x):
    return torch.nn.functional.silu(x)
def _sigmoid(x):
    return torch.sigmoid(x)
def _layernorm(x, axis=-1, eps=1e-5):
    m = x.mean(dim=axis, keepdim=True)
    v = x.var(dim=axis, keepdim=True, unbiased=False)
    return (x - m) / torch.sqrt(v + eps)
def _scatter_add(tgt, idx, src, axis=0):
    return tgt.clone().index_add_(axis, idx, src)
def _segment_sum(src, seg, n):
    out = torch.zeros((n,) + src.shape[1:], dtype=src.dtype)
    return out.index_add_(0, seg, src)
def _pad(x, pw):
    flat = tuple(v for pair in reversed(pw) for v in pair)
    return torch.nn.functional.pad(x, flat)

kernel_name = 'sequential_preLN__linear_attn_block__dense_activation_gelu__prompt'

def setup_inputs():

    _w = (lambda a: (lambda t: t.to(torch.bfloat16) if t.is_floating_point() else t)(torch.as_tensor(a)))
    def _A_setup():
        B, S, D = 1, 2048, 512
        return {
            "x": _w((lambda *s: torch.randn(*s, dtype=torch.bfloat16) * 0.05)(B, S, D)),
            "wqkv": _w((lambda *s: torch.randn(*s, dtype=torch.bfloat16) * 0.05)(D, 3 * D)),
            "wo": _w((lambda *s: torch.randn(*s, dtype=torch.bfloat16) * 0.05)(D, D)),
        }
    _A_in = _A_setup()

    def _B_setup():
        B, S, D, F = 1, 2048, 512, 1376
        return {
            "x": _w((lambda *s: torch.randn(*s, dtype=torch.bfloat16) * 0.05)(B, S, D)),
            "w1": _w((lambda *s: torch.randn(*s, dtype=torch.bfloat16) * 0.8)(D, F) * (D ** -0.5)),
            "b1": _w((lambda *s: torch.randn(*s, dtype=torch.bfloat16) * 12.8)(F) * 0.01),
            "w2": _w((lambda *s: torch.randn(*s, dtype=torch.bfloat16) * 0.2)(F, D) * (F ** -0.5)),
            "b2": _w((lambda *s: torch.randn(*s, dtype=torch.bfloat16) * 3.2)(D) * 0.01),
        }
    _B_in = _B_setup()

    return {
        "A_x": _A_in["x"],
        "A_wqkv": _A_in["wqkv"],
        "A_wo": _A_in["wo"],
        "B_x": _B_in["x"],
        "B_w1": _B_in["w1"],
        "B_b1": _B_in["b1"],
        "B_w2": _B_in["w2"],
        "B_b2": _B_in["b2"],
    }

def reference(A_x, A_wqkv, A_wo, B_x, B_w1, B_b1, B_w2, B_b2):
    def _A_ref(x, wqkv, wo):
        B, S, D = x.shape
        H = 32; Dh = D // H
        qkv = (lambda x, *d: x.permute(*d))((x @ wqkv).reshape(B, S, 3, H, Dh), 2, 0, 3, 1, 4)
        q, k, v = qkv[0], qkv[1], qkv[2]
        phi = lambda t: torch.where(t > 0, t + 1, torch.exp(t)) + 1e-6
        pq, pk = phi(q), phi(k)
        kv = torch.einsum("bhsd,bhse->bhde", pk, v)
        z = torch.einsum("bhsd->bhd", pk)
        num = torch.einsum("bhqd,bhde->bhqe", pq, kv)
        den = torch.einsum("bhqd,bhd->bhq", pq, z)[..., None] + 1e-6
        o = num / den
        return (lambda x, *d: x.permute(*d))(o, 0, 2, 1, 3).reshape(B, S, D) @ wo

    def _B_ref(x, w1, b1, w2, b2):
        h = torch.einsum("bsd,df->bsf", x, w1) + b1
        h = _gelu(h)
        return torch.einsum("bsf,fd->bsd", h, w2) + b2

    x = A_x
    h = x + _A_ref(_layernorm(x, axis=-1), A_wqkv, A_wo)
    h2 = h + _B_ref(_layernorm(h, axis=-1), B_w1, B_b1, B_w2, B_b2)
    return h2
```

```python
import re

REG_RE = re.compile(r"^(-|abs\()?\|?([vas])(\d+|\[(\d+):(\d+)\])\|?\)?$")


def parse_reg(tok):
    t = tok.strip()
    if t.startswith("-"):
        t = t[1:]
    if t.startswith("abs(") and t.endswith(")"):
        t = t[4:-1]
    if t.startswith("|") and t.endswith("|"):
        t = t[1:-1]
    if t == "vcc":
        return [("s", "vcc")]
    if t == "exec":
        return [("s", "exec")]
    if t == "m0":
        return [("s", "m0")]
    m = re.match(r"^([vas])(\d+)$", t)
    if m:
        return [(m.group(1), int(m.group(2)))]
    m = re.match(r"^([vas])\[(\d+):(\d+)\]$", t)
    if m:
        return [(m.group(1), i) for i in range(int(m.group(2)), int(m.group(3)) + 1)]
    return []


TRANS = ("v_exp_f32", "v_log_f32", "v_rcp_f32", "v_rsq_f32", "v_sqrt_f32", "v_sin_f32", "v_cos_f32")


def mfma_passes(op):
    if "32x32x16" in op:
        return 8
    if "16x16x32" in op:
        return 4
    if "4x4x4" in op:
        return 2
    raise ValueError(op)


class Ins:
    __slots__ = ("text", "op", "ops", "mods", "rd", "wr", "cls", "srcc", "srcab", "passes", "states", "wide")

    def __init__(self, text):
        self.text = text
        parts = text.split(None, 1)
        op = parts[0]
        self.op = op
        rest = parts[1] if len(parts) > 1 else ""
        toks, depth, cur = [], 0, ""
        for ch in rest:
            if ch in "[(":
                depth += 1
            if ch in "])":
                depth -= 1
            if ch == "," and depth == 0:
                toks.append(cur.strip())
                cur = ""
            else:
                cur += ch
        if cur.strip():
            toks.append(cur.strip())
        mods = ""
        if toks:
            last = toks[-1].split(None, 1)
            toks[-1] = last[0]
            mods = last[1] if len(last) > 1 else ""
        self.ops = toks
        self.mods = mods
        self.srcc = set()
        self.srcab = set()
        self.passes = 0
        self.states = 1
        self.wide = False
        regs = [parse_reg(t) for t in toks]
        rd, wr = set(), set()
        allr = lambda lst: set(r for x in lst for r in x)
        if op == "s_nop":
            self.cls = "nop"
            self.states = int(toks[0], 0) + 1
        elif op.startswith("v_mfma"):
            self.cls = "mfma"
            self.passes = mfma_passes(op)
            wr = set(regs[0])
            self.srcab = set(regs[1]) | set(regs[2])
            self.srcc = set(regs[3])
            rd = self.srcab | self.srcc
        elif op.startswith("buffer_") or op.startswith("global_"):
            self.cls = "vmem"
            is_lds = " lds" in (" " + mods) or "load_lds" in op
            if op in ("buffer_wbl2", "buffer_inv"):
                pass
            elif "load" in op and not is_lds:
                wr = set(regs[0])
                rd = allr(regs[1:])
            elif is_lds:
                rd = allr(regs) | {("s", "m0")}
                self.cls = "vmem_lds"
            elif "atomic" in op and "sc0" in mods.split():
                rd = allr(regs)
                wr = set(regs[0])
            else:
                rd = allr(regs)
                self.wide = "x3" in op or "x4" in op
        elif op.startswith("ds_"):
            self.cls = "ds"
            if op.startswith("ds_read") or op.startswith("ds_bpermute") or op.startswith("ds_swizzle") or "_rtn" in op:
                wr = set(regs[0])
                rd = allr(regs[1:])
            else:
                rd = allr(regs)
        elif op.startswith("s_load") or op.startswith("s_memtime") or op.startswith("s_memrealtime") or op.startswith("s_buffer_load"):
            self.cls = "smem"
            wr = set(regs[0])
            rd = allr(regs[1:])
        elif op.startswith("s_"):
            self.cls = "salu"
            if op.startswith("s_cmp") or op.startswith("s_cbranch") or op in ("s_branch", "s_barrier", "s_waitcnt", "s_endpgm", "s_sleep", "s_setprio") or op.startswith("s_bitcmp"):
                rd = allr(regs)
                if op.startswith("s_cbranch_vcc"):
                    rd.add(("s", "vcc"))
            else:
                wr = set(regs[0])
                rd = allr(regs[1:])
                if op in ("s_addk_i32", "s_mulk_i32", "s_cmov_b32", "s_cmov_b64"):
                    rd |= wr
                if "saveexec" in op:
                    wr.add(("s", "exec"))
        elif op.startswith("v_"):
            self.cls = "valu"
            base = op.replace("_e32", "").replace("_e64", "")
            if base in TRANS:
                self.cls = "trans"
            if op.startswith("v_dot"):
                self.cls = "dot"
            if op.startswith("v_permlane") and "swap" in op:
                wr = allr(regs[:2])
                rd = set(wr)
            elif op.startswith("v_add_co") or op.startswith("v_sub_co") or op.startswith("v_addc_co"):
                wr = allr(regs[:2])
                rd = allr(regs[2:])
            else:
                wr = set(regs[0])
                rd = allr(regs[1:])
                if op.startswith("v_fmac") or op.startswith("v_dot2c") or op.startswith("v_writelane") or "_dpp" in op or "_sdwa" in op:
                    rd |= wr
        else:
            raise ValueError("unknown op: " + text)
        self.rd, self.wr = rd, wr

    @property
    def is_valu(self):
        return self.cls in ("valu", "trans", "dot")


def vregs(s):
    return set(r for r in s if r[0] in "va")


def sregs(s):
    return set(r for r in s if r[0] == "s")


def need_states(p, c):
    n = 0
    idx = {2: 0, 4: 1, 8: 2, 16: 3}
    if p.cls == "mfma":
        k = idx[p.passes]
        D = p.wr
        if c.cls == "mfma":
            if D & c.srcab:
                n = max(n, (5, 8, 12, 20)[k])
            if D & c.srcc:
                if c.srcc == D and c.passes == p.passes:
                    n = max(n, (2, 0, 0, 0)[k])
                else:
                    n = max(n, (4, 6, 10, 18)[k])
            elif D & c.wr:
                n = max(n, (4, 6, 10, 18)[k])
        elif c.is_valu or c.cls in ("vmem", "vmem_lds", "ds"):
            if D & (c.rd | c.wr):
                n = max(n, (5, 8, 12, 20)[k])
        if c.is_valu and (p.srcc & c.wr):
            n = max(n, (1, 3, 7, 15)[k])
    if p.is_valu:
        pv = vregs(p.wr)
        ps = sregs(p.wr)
        if c.cls == "mfma" and pv & c.rd:
            n = max(n, 3 if p.cls == "dot" else 2)
        if p.cls == "dot" and pv & (c.rd | c.wr):
            if c.op == p.op and not (pv & (set(parse_reg(c.ops[1])) | set(parse_reg(c.ops[2])))):
                pass
            else:
                n = max(n, 3)
        if p.cls == "trans" and c.is_valu and c.cls != "trans" and pv & c.rd:
            n = max(n, 1)
        if p.cls == "trans" and c.cls != "trans" and pv & c.rd:
            n = max(n, 1)
        if c.is_valu and pv & c.rd:
            if "_dpp" in c.op or c.op.startswith("v_permlane"):
                n = max(n, 2)
            if c.op.startswith("v_readlane") or c.op.startswith("v_readfirstlane"):
                n = max(n, 1)
            if "_sdwa" in p.op or "op_sel" in p.mods and not p.op.startswith("v_pk_") and not p.op.startswith("v_dot"):
                n = max(n, 1)
        if ps:
            if c.cls in ("vmem", "vmem_lds") and ps & c.rd:
                n = max(n, 5)
            if c.is_valu and ps & c.rd:
                n = max(n, 4 if c.op.startswith(("v_readlane", "v_writelane")) else 2)
            if c.cls in ("salu", "smem") and ps & c.rd:
                n = max(n, 1)
    if p.cls == "salu" and ("s", "m0") in p.wr and c.cls == "vmem_lds":
        n = max(n, 1)
    if p.cls == "vmem" and p.wide:
        data = set(parse_reg(p.ops[0])) if p.op.startswith("buffer") else set(parse_reg(p.ops[1]))
        if data & c.wr:
            n = max(n, 2)
    return n


class Asm:
    def __init__(self):
        self.lines = []
        self.hist = []
        self.vm = []
        self.lg = []
        self.stack = []
        self.nbytes_hint = 0

    def raw(self, s):
        self.lines.append(s)

    def comment(self, s):
        self.lines.append("; " + s)

    def label(self, name, flush=True):
        if flush:
            self._pad_all()
        self.lines.append(name + ":")

    def _pad_all(self):
        dist = 0
        need = 0
        for p in reversed(self.hist):
            w = 0
            if p.cls == "mfma":
                w = {2: 5, 4: 8, 8: 12, 16: 20}[p.passes]
            elif p.is_valu:
                w = 5 if sregs(p.wr) else 3
            elif p.cls == "salu" and ("s", "m0") in p.wr:
                w = 1
            elif p.cls == "vmem" and p.wide:
                w = 2
            need = max(need, w - dist)
            dist += p.states
            if dist > 24:
                break
        self._nop(need)

    def _nop(self, n):
        while n > 0:
            k = min(n, 16)
            i = Ins(f"s_nop {k-1}")
            self.lines.append("\t" + i.text)
            self.hist.append(i)
            n -= k

    def _emit_wait(self, vm=None, lg=None):
        parts = []
        if vm is not None and vm < len(self.vm):
            vm = min(vm, 63)
            parts.append(f"vmcnt({vm})")
            self.vm = self.vm[len(self.vm) - vm:] if vm else []
        if lg is not None and lg < len(self.lg):
            if any(e["smem"] for e in self.lg):
                lg = 0
            lg = min(lg, 15)
            parts.append(f"lgkmcnt({lg})")
            self.lg = self.lg[len(self.lg) - lg:] if lg else []
        if parts:
            i = Ins("s_waitcnt " + " ".join(parts))
            self.lines.append("\t" + i.text)
            self.hist.append(i)

    def wait(self, vm=None, lg=None):
        self._emit_wait(vm, lg)

    def wait_tag(self, *tags):
        vm = lg = None
        for k, e in enumerate(self.vm):
            if e["tag"] in tags:
                vm = len(self.vm) - 1 - k
        for k, e in enumerate(self.lg):
            if e["tag"] in tags:
                lg = len(self.lg) - 1 - k
        self._emit_wait(vm, lg)

    def __call__(self, text, tag=None):
        for line in text.split("\n"):
            line = line.split(";")[0].strip()
            if not line:
                continue
            self._one(line, tag)

    def _one(self, text, tag):
        i = Ins(text)
        if i.op == "s_waitcnt":
            m = re.search(r"vmcnt\((\d+)\)", text)
            n = re.search(r"lgkmcnt\((\d+)\)", text)
            if m:
                k = int(m.group(1))
                self.vm = self.vm[len(self.vm) - k:] if k and k < len(self.vm) else ([] if k == 0 else self.vm)
            if n:
                k = int(n.group(1))
                if k == 0:
                    self.lg = []
                elif not any(e["smem"] for e in self.lg) and k < len(self.lg):
                    self.lg = self.lg[len(self.lg) - k:]
            self.lines.append("\t" + text)
            self.hist.append(i)
            return
        touched = i.rd | i.wr
        vm = lg = None
        for k, e in enumerate(self.vm):
            if e["regs"] & touched:
                vm = len(self.vm) - 1 - k
        for k, e in enumerate(self.lg):
            if e["regs"] & touched:
                lg = len(self.lg) - 1 - k
        self._emit_wait(vm, lg)
        dist, need = 0, 0
        for p in reversed(self.hist):
            need = max(need, need_states(p, i) - dist)
            dist += p.states
            if dist > 24:
                break
        self._nop(need)
        if i.op.startswith("s_cbranch") or i.op == "s_branch":
            self._pad_all()
        self.lines.append("\t" + text)
        self.hist.append(i)
        if len(self.hist) > 64:
            self.hist = self.hist[-40:]
        if i.cls in ("vmem", "vmem_lds"):
            self.vm.append(dict(regs=set(i.wr), tag=tag))
        elif i.cls == "ds":
            self.lg.append(dict(regs=set(i.wr), tag=tag, smem=False))
        elif i.cls == "smem":
            self.lg.append(dict(regs=set(i.wr), tag=tag, smem=True))

    def cond_begin(self):
        self.stack.append((list(self.vm), list(self.lg)))

    def cond_end(self):
        vm, lg = self.stack.pop()
        for e in self.vm:
            if e["regs"] and not any(e is x for x in vm):
                raise RuntimeError("load left pending at end of conditional region")
        for e in self.lg:
            if e["regs"] and not any(e is x for x in lg):
                raise RuntimeError("lds/smem read left pending at end of conditional region")
        self.vm, self.lg = vm, lg

    def barrier(self, lg=True):
        if lg:
            self._emit_wait(None, 0)
        self("s_barrier")

    def text(self):
        return "\n".join(self.lines) + "\n"


def R(kind, a, n=1):
    return f"{kind}{a}" if n == 1 else f"{kind}[{a}:{a+n-1}]"


def v(a, n=1):
    return R("v", a, n)


def a_(a, n=1):
    return R("a", a, n)


def s(a, n=1):
    return R("s", a, n)


class Alloc:
    def __init__(self, kind, lo, hi):
        self.kind, self.lo, self.hi = kind, lo, hi
        self.used = [False] * (hi + 1)
        self.peak = lo

    def get(self, n=1, align=None):
        if align is None:
            align = 1 if n == 1 else (2 if self.kind != "s" else (2 if n == 2 else 4))
        a = (self.lo + align - 1) // align * align
        while a + n - 1 <= self.hi:
            if not any(self.used[a:a + n]):
                for k in range(a, a + n):
                    self.used[k] = True
                self.peak = max(self.peak, a + n)
                return a
            a += align
        raise RuntimeError(f"out of {self.kind} registers (want {n})")

    def free(self, a, n=1):
        for k in range(a, a + n):
            assert self.used[k], (self.kind, k)
            self.used[k] = False
```

```python
import sys
from asmgen import *

NAME = "sequential_preLN__linear_attn_block__dense_activation_gelu__prompt"
HDR = open("cdna_kernels/" + NAME + ".s.ref").read().split("; Override launch")[0]

WS_PQ = 0
WS_H = 2 << 20
WS_HID = 4 << 20
WS_KV = 10 << 20
WS_HST = 11 << 20
WS_SIZE = 12 << 20
KVH = 1088
LOG2E = 1.4426950408889634
import struct


def f2u(x):
    return struct.unpack("<I", struct.pack("<f", x))[0]


def hx(x):
    return f"0x{f2u(x):08x}"


MF = "v_mfma_f32_32x32x16_bf16"

S_X, S_WQKV, S_WO, S_W1, S_B1, S_W2, S_B2, S_OUT, S_DBG, S_WS = 8, 12, 16, 20, 24, 28, 32, 36, 40, 44
SIZES = {S_X: 2 << 20, S_WQKV: 512 * 1536 * 2, S_WO: 512 * 512 * 2, S_W1: 512 * 1376 * 2, S_B1: 1376 * 2,
         S_W2: 1376 * 512 * 2, S_B2: 1024, S_OUT: 2 << 20, S_DBG: 256, S_WS: WS_SIZE}
KOFF = {S_X: 0, S_WQKV: 8, S_WO: 16, S_W1: 32, S_B1: 40, S_W2: 48, S_B2: 56, S_OUT: 64, S_DBG: 72, S_WS: 80}
S_WAVE, S_RB, S_C, S_ONES = 48, 49, 50, 51
S_T0 = 52


def prologue(A, name, need, nwg=256):
    A.raw(f".globl {name}\n.p2align 8\n.type {name},@function\n{name}:")
    A(f"s_cmp_ge_u32 s2, {nwg}")
    A(f"s_cbranch_scc1 L_end_{name}")
    for r in need:
        A(f"s_load_dwordx2 {s(r,2)}, s[0:1], {KOFF[r]}")
    A("v_lshrrev_b32 v1, 6, v0")
    A(f"v_readfirstlane_b32 s{S_WAVE}, v1")
    A("v_and_b32 v0, 63, v0")
    for r in need:
        A(f"s_mov_b32 s{r+2}, {SIZES[r]}")
        A(f"s_mov_b32 s{r+3}, 0x20000")
    A(f"s_and_b32 s{S_RB}, s2, 7")
    A(f"s_lshl_b32 s{S_RB}, s{S_RB}, 2")
    A(f"s_lshr_b32 s{S_T0}, s2, 6")
    A(f"s_add_u32 s{S_RB}, s{S_RB}, s{S_T0}")
    A(f"s_lshr_b32 s{S_C}, s2, 3")
    A(f"s_and_b32 s{S_C}, s{S_C}, 7")
    A(f"s_mov_b32 s{S_ONES}, 0x3f803f80")


def epilogue(A, name, nv, na):
    A.label(f"L_end_{name}")
    A("s_endpgm")
    nvv = (nv + 3) // 4 * 4
    tot = nvv + na if na else nv
    A.raw(f""".section .rodata,"a"
.p2align 6
.amdhsa_kernel {name}
  .amdhsa_next_free_vgpr {tot}
  .amdhsa_next_free_sgpr 102
  .amdhsa_accum_offset {nvv}
  .amdhsa_group_segment_fixed_size 0
  .amdhsa_kernarg_size 88
  .amdhsa_user_sgpr_count 2
  .amdhsa_user_sgpr_kernarg_segment_ptr 1
  .amdhsa_system_sgpr_workgroup_id_x 1
.end_amdhsa_kernel
.text""")
    A.vm, A.lg, A.hist = [], [], []


def dma(A, voff, srd, soff, ldsaddr_s, tag, flags=""):
    A(f"s_mov_b32 m0, {ldsaddr_s}")
    A(f"buffer_load_dwordx4 v{voff}, {s(srd,4)}, {soff} offen {flags} lds", tag=tag)


def split_hilo(A, dst_hh, dst_ll, src, tmp, neg=False):
    n = "-" if neg else ""
    A(f"v_cvt_pk_bf16_f32 v{dst_hh}, {n}v{src}, {n}v{src}")
    A(f"v_and_b32 v{tmp}, 0xffff0000, v{dst_hh}")
    A(f"v_sub_f32 v{tmp}, {n}v{src}, v{tmp}" if not neg else f"v_sub_f32_e64 v{tmp}, -v{src}, v{tmp}")
    A(f"v_cvt_pk_bf16_f32 v{dst_ll}, v{tmp}, v{tmp}")


def pack_hl(A, dst, src, tmp):
    A(f"v_cvt_pk_bf16_f32 v{tmp}, v{src}, v{src}")
    A(f"v_and_b32 v{tmp}, 0xffff0000, v{tmp}")
    A(f"v_sub_f32 v{dst}, v{src}, v{tmp}")
    A(f"v_cvt_pk_bf16_f32 v{dst}, v{tmp}, v{dst}")


def kernel_Z(A):
    name = "z_kernel"
    prologue(A, name, [S_WS], nwg=9)
    A(f"s_lshl_b32 s{S_T0}, s2, 2")
    A(f"s_add_u32 s{S_T0}, s{S_T0}, s{S_WAVE}")
    A(f"s_lshl_b32 s{S_T0}, s{S_T0}, 10")
    A(f"s_add_u32 s{S_T0}, s{S_T0}, {WS_KV}")
    A("v_lshlrev_b32 v1, 4, v0")
    for r in range(4, 8):
        A(f"v_mov_b32 v{r}, 0")
    A(f"buffer_store_dwordx4 v[4:7], v1, {s(S_WS,4)}, s{S_T0} offen")
    epilogue(A, name, 8, 0)


def phase_A(A, V, G):
    LX, LK, LV_, LS = 0, 49152, 98304, 147456
    sW = S_WAVE
    t0, t1, t2 = V.get(), V.get(), V.get()
    vX, vK, vVv, vQ = V.get(), V.get(), V.get(), V.get()
    A(f"v_lshrrev_b32 v{t0}, 4, v0")
    A(f"s_lshl_b32 s{S_T0}, s{sW}, 2")
    A(f"v_add_u32 v{t0}, s{S_T0}, v{t0}")
    A(f"v_and_b32 v{t1}, 15, v0")
    A(f"v_xor_b32 v{t1}, v{t1}, v{t0}")
    A(f"v_lshlrev_b32 v{t1}, 4, v{t1}")
    A(f"v_lshl_add_u32 v{vX}, v{t0}, 10, v{t1}")
    A(f"v_lshrrev_b32 v{t0}, 3, v0")
    A(f"v_mul_u32_u24 v{t2}, 3072, v{t0}")
    A(f"v_and_b32 v{t0}, 2, v{t0}")
    A(f"v_and_b32 v{t1}, 7, v0")
    A(f"v_xor_b32 v{vK}, v{t1}, v{t0}")
    A(f"v_xor_b32 v{vVv}, 4, v{vK}")
    A(f"v_lshlrev_b32 v{t0}, 1, v{t0}")
    A(f"v_xor_b32 v{vQ}, v{t1}, v{t0}")
    for r in (vK, vVv, vQ):
        A(f"v_lshl_add_u32 v{r}, v{r}, 4, v{t2}")
    sXo, sWo, sL, sL2, sT = S_T0 + 1, S_T0 + 2, S_T0 + 3, S_T0 + 4, S_T0 + 5
    A(f"s_lshl_b32 s{sXo}, s{S_RB}, 16")
    A(f"s_lshl_b32 s{sWo}, s{S_C}, 7")
    A(f"s_mul_i32 s{sT}, s{sW}, {32*3072}")
    A(f"s_add_u32 s{sWo}, s{sWo}, s{sT}")
    A(f"s_lshl_b32 s{sL}, s{sW}, 10")
    A(f"s_lshl_b32 s{sL2}, s{sW}, 12")

    def load_x(kc, slot):
        for j in range(4):
            A(f"s_add_u32 m0, s{sL}, {LX + slot*16384 + j*4096}")
            A(f"s_add_u32 s{sT}, s{sXo}, {j*16384 + kc*256}")
            A(f"buffer_load_dwordx4 v{vX}, {s(S_X,4)}, s{sT} offen lds", tag=f"c{kc}")

    def load_w(voff, colbase, kc, lds, tag):
        for j in range(4):
            A(f"s_add_u32 m0, s{sL2}, {lds + j*1024}")
            A(f"s_add_u32 s{sT}, s{sWo}, {(kc*128 + j*8)*3072 + colbase}")
            A(f"buffer_load_dwordx4 v{voff}, {s(S_WQKV,4)}, s{sT} offen lds", tag=tag)

    def load_chunk(kc, slot):
        load_x(kc, slot)
        load_w(vK, 1024, kc, LK + slot * 16384, f"c{kc}")
        load_w(vVv, 2048, kc, LV_ + slot * 16384, f"c{kc}")

    for kc in range(3):
        load_chunk(kc, kc)
    QSLOT = [LX + 16384, LK + 16384, LV_ + 16384, LX + 32768]

    xa = V.get(8, 1)
    xb = V.get(8, 1)
    A(f"v_and_b32 v{t0}, 31, v0")
    A(f"v_lshrrev_b32 v{t1}, 5, v0")
    A(f"v_and_b32 v{t2}, 15, v0")
    A(f"v_xor_b32 v{t1}, v{t1}, v{t2}")
    A(f"v_lshlrev_b32 v{t1}, 4, v{t1}")
    A(f"v_lshl_add_u32 v{t1}, v{t0}, 8, v{t1}")
    A(f"s_and_b32 s{sT}, s{sW}, 1")
    A(f"s_lshl_b32 s{sT}, s{sT}, 13")
    A(f"v_add_u32 v{xa}, s{sT}, v{t1}")
    for k in range(1, 8):
        A(f"v_xor_b32 v{xa+k}, {k*32}, v{xa}")
    for k in range(8):
        A(f"v_xor_b32 v{xb+k}, 0x2000, v{xa+k}")
    wkv, wq, wq2 = V.get(), V.get(), V.get()
    A(f"v_bfe_u32 v{t0}, v0, 2, 2")
    A(f"v_lshrrev_b32 v{t1}, 5, v0")
    A(f"v_lshl_add_u32 v{t1}, v{t1}, 3, v{t0}")
    A(f"v_lshlrev_b32 v{t1}, 7, v{t1}")
    A(f"v_and_b32 v{t2}, 3, v0")
    A(f"v_lshl_add_u32 v{t1}, v{t2}, 3, v{t1}")
    A(f"v_lshrrev_b32 v{t0}, 1, v{t0}")
    A(f"v_bfe_u32 v{t2}, v0, 4, 1")
    A(f"v_lshl_add_u32 v{wkv}, v{t2}, 1, v{t0}")
    A(f"v_xor_b32 v{wkv}, s{sW}, v{wkv}")
    A(f"v_lshl_add_u32 v{wkv}, v{wkv}, 5, v{t1}")
    A(f"v_mul_u32_u24 v{wq2}, {LV_-LK}, v{t2}")
    A(f"v_add_u32 v{wkv}, v{wkv}, v{wq2}")
    A(f"v_add_u32 v{wkv}, {LK}, v{wkv}")
    A(f"s_lshr_b32 s{sT}, s{sW}, 1")
    A(f"v_xor_b32 v{wq}, s{sT}, v{t0}")
    A(f"v_lshl_add_u32 v{wq}, v{wq}, 6, v{t1}")
    A(f"v_lshl_add_u32 v{wq}, v{t2}, 5, v{wq}")
    A(f"v_add_u32 v{wq2}, 0x10000, v{wq}")
    st = V.get(4, 1)
    A(f"v_lshrrev_b32 v{t0}, 2, v0")
    A(f"s_lshl_b32 s{sT}, s{sW}, 4")
    A(f"v_add_u32 v{t1}, s{sT}, v{t0}")
    A(f"v_and_b32 v{t0}, 3, v{t0}")
    A(f"v_and_b32 v{t2}, 3, v0")
    A(f"v_lshl_add_u32 v{t2}, v{t0}, 2, v{t2}")
    A(f"v_lshlrev_b32 v{t2}, 4, v{t2}")
    A(f"v_lshl_add_u32 v{st}, v{t1}, 8, v{t2}")
    for k in range(1, 4):
        A(f"v_xor_b32 v{st+k}, {k*64}, v{st}")
    vrow = V.get()
    A(f"v_mov_b32 v{vrow}, v{t1}")

    acc0, acc1 = V.get(16), V.get(16)
    wf = V.get(32)
    xo = V.get(16)
    sx = V.get(16)
    s1, s2_, cs = V.get(), V.get(), V.get()
    for r in (s1, s2_, cs):
        A(f"v_mov_b32 v{r}, 0")
    xown = G.get(128)

    def reads(kc, slot, ks):
        A(f"ds_read_b128 {a_(xown + (kc*8+ks)*4, 4)}, v{xa+ks} offset:{slot*16384}")
        A(f"ds_read_b64_tr_b16 {v(wf+ks*4,2)}, v{wkv} offset:{slot*16384 + ks*2048}")
        A(f"ds_read_b64_tr_b16 {v(wf+ks*4+2,2)}, v{wkv} offset:{slot*16384 + ks*2048 + 512}")
        A(f"ds_read_b128 {v(xo+(ks%4)*4,4)}, v{xb+ks} offset:{slot*16384}")

    for kc in range(4):
        slot = kc % 3
        A.wait_tag(f"c{kc}")
        A.barrier()
        if kc == 1:
            load_chunk(3, 0)
        if kc == 2:
            for q in range(3):
                load_w(vQ, 0, q, QSLOT[q], f"q{q}")
        if kc == 3:
            load_w(vQ, 0, 3, QSLOT[3], "q3")
        for ks in range(3):
            reads(kc, slot, ks)
        for ks in range(8):
            first = kc == 0 and ks == 0
            A(f"{MF} {v(acc0,16)}, {a_(xown+(kc*8+ks)*4,4)}, {v(wf+ks*4,4)}, {'0' if first else v(acc0,16)}")
            A(f"{MF} {v(acc1,16)}, {v(xo+(ks%4)*4,4)}, {v(wf+ks*4,4)}, {'0' if first else v(acc1,16)}")
            if ks + 3 < 8:
                reads(kc, slot, ks + 3)
            if ks == 5:
                for k in range(4):
                    A(f"ds_read_b128 {v(sx+4*k,4)}, v{st+k} offset:{slot*16384}")
        for k in range(32):
            A(f"v_dot2c_f32_bf16 v{cs}, s{S_ONES}, v{wf+k}")
        for k in range(16):
            A(f"v_dot2c_f32_bf16 v{s1}, s{S_ONES}, v{sx+k}")
            A(f"v_dot2c_f32_bf16 v{s2_}, v{sx+k}, v{sx+k}")

    for r in (s1, s2_):
        A(f"v_add_f32_dpp v{r}, v{r}, v{r} quad_perm:[1,0,3,2] row_mask:0xf bank_mask:0xf")
    for r in (s1, s2_):
        A(f"v_add_f32_dpp v{r}, v{r}, v{r} quad_perm:[2,3,0,1] row_mask:0xf bank_mask:0xf")
    A(f"v_mul_f32 v{s1}, {hx(1/512)}, v{s1}")
    A(f"v_mul_f32 v{t0}, v{s1}, v{s1}")
    A(f"v_mul_f32 v{s2_}, {hx(1/512)}, v{s2_}")
    A(f"v_sub_f32 v{s2_}, v{s2_}, v{t0}")
    A(f"v_max_f32 v{s2_}, 0, v{s2_}")
    A(f"v_add_f32 v{s2_}, {hx(1e-5)}, v{s2_}")
    A(f"v_rsq_f32 v{s2_}, v{s2_}")
    mm = V.get(2)
    split_hilo(A, mm, mm + 1, s1, t0, neg=True)
    A(f"v_lshlrev_b32 v{t0}, 2, v{vrow}")
    A(f"v_add_u32 v{t0}, {LS}, v{t0}")
    A(f"ds_write_b32 v{t0}, v{s2_}")
    A(f"v_lshlrev_b32 v{t1}, 3, v{vrow}")
    A(f"v_add_u32 v{t1}, {LS+256}, v{t1}")
    A(f"ds_write_b64 v{t1}, {v(mm,2)}")
    augw = V.get(4)
    pack_hl(A, augw, cs, t2)
    A(f"v_mov_b32 v{augw+1}, v{augw}")
    A(f"v_mov_b32 v{augw+2}, 0")
    A(f"v_mov_b32 v{augw+3}, 0")
    A.barrier()
    augx0, augx1 = V.get(4), V.get(4)
    A(f"s_and_b32 s{sT}, s{sW}, 1")
    A(f"s_lshl_b32 s{sT}, s{sT}, 5")
    A(f"v_and_b32 v{t0}, 31, v0")
    A(f"v_add_u32 v{t0}, s{sT}, v{t0}")
    A(f"v_lshlrev_b32 v{t1}, 3, v{t0}")
    A(f"v_add_u32 v{t1}, {LS+256}, v{t1}")
    A(f"ds_read_b64 {v(augx0,2)}, v{t1}")
    A(f"v_xor_b32 v{t1}, 256, v{t0}")
    A(f"v_xor_b32 v{t1}, 32, v{t0}")
    A(f"v_lshlrev_b32 v{t1}, 3, v{t1}")
    A(f"v_add_u32 v{t1}, {LS+256}, v{t1}")
    A(f"ds_read_b64 {v(augx1,2)}, v{t1}")
    rq = V.get(2)
    A(f"v_lshlrev_b32 v{t1}, 2, v{t0}")
    A(f"v_add_u32 v{t1}, {LS}, v{t1}")
    A(f"ds_read_b32 v{rq}, v{t1}")
    rr = wf
    A(f"v_lshrrev_b32 v{t1}, 5, v0")
    A(f"v_lshlrev_b32 v{t1}, 2, v{t1}")
    A(f"v_add_u32 v{t1}, s{sT}, v{t1}")
    A(f"v_xor_b32 v{t2}, 32, v{t1}")
    A(f"v_lshlrev_b32 v{t1}, 2, v{t1}")
    A(f"v_lshlrev_b32 v{t2}, 2, v{t2}")
    A(f"v_add_u32 v{t1}, {LS}, v{t1}")
    A(f"v_add_u32 v{t2}, {LS}, v{t2}")
    for g in range(4):
        A(f"ds_read_b128 {v(rr+4*g,4)}, v{t1} offset:{g*32}")
    for g in range(4):
        A(f"ds_read_b128 {v(rr+16+4*g,4)}, v{t2} offset:{g*32}")
    for r in (augx0, augx1):
        A(f"v_mov_b32 v{r+2}, 0")
        A(f"v_mov_b32 v{r+3}, 0")
    A(f"{MF} {v(acc0,16)}, {v(augx0,4)}, {v(augw,4)}, {v(acc0,16)}")
    A(f"{MF} {v(acc1,16)}, {v(augx1,4)}, {v(augw,4)}, {v(acc1,16)}")
    c1, c2, c3, cl, cm = V.get(2), V.get(2), V.get(2), V.get(2), V.get(2)
    A(f"v_and_b32 v{t0}, 16, v0")
    A(f"v_cmp_eq_u32 vcc, 0, v{t0}")
    A(f"v_mov_b32 v{t1}, {hx(1e-6)}")
    A(f"v_mov_b32 v{t2}, 0xff800000")
    A(f"v_cndmask_b32 v{c1}, v{t2}, v{t1}, vcc")
    A(f"v_cndmask_b32 v{c3}, 0, v{t1}, vcc")
    A(f"v_mov_b32 v{t2}, 1.0")
    A(f"v_cndmask_b32 v{c2}, 0, v{t2}, vcc")
    A(f"v_mov_b32 v{cl}, {hx(LOG2E)}")
    A(f"v_mov_b32 v{cm}, {hx(-1e-6*LOG2E)}")
    fr = xo
    fb = sx
    u = V.get(4)
    for ti, acc in enumerate((acc0, acc1)):
        for p in range(8):
            a = acc + 2 * p
            uu = u + 2 * (p % 2)
            A(f"v_pk_fma_f32 {v(a,2)}, {v(a,2)}, {v(rr+16*ti+2*p,2)}, {v(c3,2)} op_sel_hi:[1,1,0]")
            A(f"v_pk_fma_f32 {v(uu,2)}, {v(a,2)}, {v(cl,2)}, {v(cm,2)} op_sel_hi:[1,0,0]")
            A(f"v_max_f32 v{a}, v{a}, v{c1}")
            A(f"v_exp_f32 v{uu}, v{uu} clamp")
            A(f"v_exp_f32 v{uu+1}, v{uu+1} clamp")
            A(f"v_max_f32 v{a+1}, v{a+1}, v{c1}")
            A(f"v_pk_fma_f32 {v(a,2)}, {v(uu,2)}, {v(c2,2)}, {v(a,2)} op_sel_hi:[1,0,1]")
            A(f"v_cvt_pk_bf16_f32 v{fr+8*ti+p}, v{a}, v{a+1}")
    A(f"v_mov_b32 v{t1}, s{S_ONES}")
    for k in range(16):
        A(f"v_cndmask_b32 v{fb+k}, v{fr+k}, v{t1}, vcc")
    for f in range(4):
        A(f"{MF} {v(acc0,16)}, {v(fr+4*f,4)}, {v(fb+4*f,4)}, {'0' if f == 0 else v(acc0,16)}")
    LT = LS + 1024
    ka0, ka1 = V.get(), V.get()
    kv_lane_offsets(A, ka0, ka1, t0, t1)
    A(f"s_mul_i32 s{sT}, s{sW}, {KVH}")
    A(f"s_add_u32 s{sT}, s{sT}, {LT}")
    A(f"v_add_u32 v{ka0}, s{sT}, v{ka0}")
    A(f"v_add_u32 v{ka1}, s{sT}, v{ka1}")
    A(f"v_lshlrev_b32 v{t2}, 2, v0")
    A(f"v_add_u32 v{t0}, s{sT}, v{t2}")
    A(f"ds_write_b128 v{ka0}, {v(acc0,4)}")
    A(f"ds_write_b128 v{ka1}, {v(acc0+4,4)}")
    for k in range(5):
        A(f"ds_read_b32 v{acc1+k}, v{t0} offset:{k*256}")
    A(f"s_lshl_b32 s{sT}, s{S_C}, 2")
    A(f"s_add_u32 s{sT}, s{sT}, s{sW}")
    A(f"s_mul_i32 s{sT}, s{sT}, {KVH}")
    A(f"s_add_u32 s{sT}, s{sT}, {WS_KV}")
    for k in range(4):
        A(f"buffer_atomic_add_f32 v{acc1+k}, v{t2}, {s(S_WS,4)}, s{sT} offen offset:{k*256}")
    A("s_mov_b64 exec, 0xffff")
    A(f"buffer_atomic_add_f32 v{acc1+4}, v{t2}, {s(S_WS,4)}, s{sT} offen offset:1024")
    A("s_mov_b64 exec, -1")

    A(f"v_mov_b32 v{cs}, 0")

    def qreads(q, ks):
        base, off = (wq, QSLOT[q]) if QSLOT[q] < 65536 - 16383 else (wq2, QSLOT[q] - 65536)
        A(f"ds_read_b64_tr_b16 {v(wf+ks*4,2)}, v{base} offset:{off + ks*2048}")
        A(f"ds_read_b64_tr_b16 {v(wf+ks*4+2,2)}, v{base} offset:{off + ks*2048 + 512}")

    for q in range(4):
        if q in (0, 3):
            A.wait_tag("q2" if q == 0 else "q3")
            A.barrier()
        for ks in range(4):
            qreads(q, ks)
        for ks in range(8):
            first = q == 0 and ks == 0
            A(f"{MF} {v(acc1,16)}, {v(wf+ks*4,4)}, {a_(xown+(q*8+ks)*4,4)}, {'0' if first else v(acc1,16)}")
            if ks + 4 < 8:
                qreads(q, ks + 4)
        for k in range(32):
            A(f"v_dot2c_f32_bf16 v{cs}, s{S_ONES}, v{wf+k}")
    pack_hl(A, augw, cs, t2)
    A(f"v_mov_b32 v{augw+1}, v{augw}")
    A(f"{MF} {v(acc1,16)}, {v(augw,4)}, {v(augx0,4)}, {v(acc1,16)}")
    A(f"v_mov_b32 v{c3}, {hx(1e-6)}")
    for p in range(8):
        a = acc1 + 2 * p
        uu = u + 2 * (p % 2)
        A(f"v_pk_fma_f32 {v(a,2)}, {v(a,2)}, {v(rq,2)}, {v(c3,2)} op_sel_hi:[1,0,0]")
        A(f"v_pk_fma_f32 {v(uu,2)}, {v(a,2)}, {v(cl,2)}, {v(cm,2)} op_sel_hi:[1,0,0]")
        A(f"v_max_f32 v{a}, v{a}, v{c3}")
        A(f"v_exp_f32 v{uu}, v{uu} clamp")
        A(f"v_exp_f32 v{uu+1}, v{uu+1} clamp")
        A(f"v_max_f32 v{a+1}, v{a+1}, v{c3}")
        A(f"v_pk_add_f32 {v(a,2)}, {v(uu,2)}, {v(a,2)}")
        A(f"v_cvt_pk_bf16_f32 v{fr+p}, v{a}, v{a+1}")
    A(f"s_lshl_b32 s{sT}, s{S_RB}, 1")
    A(f"s_and_b32 s{sL}, s{sW}, 1")
    A(f"s_add_u32 s{sT}, s{sT}, s{sL}")
    A(f"s_lshl_b32 s{sT}, s{sT}, 5")
    A(f"s_lshl_b32 s{sL}, s{S_C}, 2")
    A(f"s_add_u32 s{sT}, s{sT}, s{sL}")
    A(f"s_and_b32 s{sL}, s{sW}, 2")
    A(f"s_add_u32 s{sT}, s{sT}, s{sL}")
    A(f"s_lshl_b32 s{sT}, s{sT}, 10")
    A(f"v_lshlrev_b32 v{t2}, 4, v0")
    A(f"buffer_store_dwordx4 {v(fr,4)}, v{t2}, {s(S_WS,4)}, s{sT} offen")
    A(f"buffer_store_dwordx4 {v(fr+4,4)}, v{t2}, {s(S_WS,4)}, s{sT} offen offset:1024")


def kv_lane_offsets(A, k0, k1, t0, t1):
    A(f"v_lshrrev_b32 v{t0}, 5, v0")
    A(f"v_and_b32 v{t1}, 15, v0")
    A(f"v_lshlrev_b32 v{t1}, 4, v{t1}")
    A(f"v_lshl_add_u32 v{t1}, v{t0}, 8, v{t1}")
    A(f"v_lshlrev_b32 v{t0}, 4, v{t0}")
    A(f"v_add_u32 v{t0}, 1024, v{t0}")
    A(f"v_cndmask_b32 v{k0}, v{t1}, v{t0}, vcc")
    A(f"v_add_u32 v{t1}, 512, v{t1}")
    A(f"v_add_u32 v{t0}, 32, v{t0}")
    A(f"v_cndmask_b32 v{k1}, v{t1}, v{t0}, vcc")


def tr_base_128(A, dst, t0, t1, t2, s_half):
    A(f"v_bfe_u32 v{t0}, v0, 2, 2")
    A(f"v_lshrrev_b32 v{t1}, 5, v0")
    A(f"v_lshl_add_u32 v{t1}, v{t1}, 2, v{t0}")
    A(f"v_lshlrev_b32 v{t1}, 7, v{t1}")
    A(f"v_and_b32 v{t2}, 3, v0")
    A(f"v_lshl_add_u32 v{t1}, v{t2}, 3, v{t1}")
    A(f"v_bfe_u32 v{t2}, v0, 4, 1")
    A(f"v_lshl_add_u32 v{t1}, v{t2}, 5, v{t1}")
    A(f"v_lshrrev_b32 v{t0}, 1, v{t0}")
    A(f"v_xor_b32 v{t0}, s{s_half}, v{t0}")
    A(f"v_lshl_add_u32 v{dst}, v{t0}, 6, v{t1}")


def dma_off_128(A, dst, t0, t1, rowstride):
    A(f"v_lshrrev_b32 v{t0}, 3, v0")
    A(f"v_mul_u32_u24 v{dst}, {rowstride}, v{t0}")
    A(f"v_and_b32 v{t0}, 2, v{t0}")
    A(f"v_lshlrev_b32 v{t0}, 1, v{t0}")
    A(f"v_and_b32 v{t1}, 7, v0")
    A(f"v_xor_b32 v{t0}, v{t0}, v{t1}")
    A(f"v_lshl_add_u32 v{dst}, v{t0}, 4, v{dst}")


def phase_B(A, V, G):
    sW = S_WAVE
    sT, sU, sL, sTT, sN = S_T0, S_T0 + 1, S_T0 + 2, S_T0 + 3, S_T0 + 4
    t0, t1, t2 = V.get(), V.get(), V.get()
    LRED = 65536
    ka0, ka1, l16 = V.get(), V.get(), V.get()
    A(f"v_and_b32 v{t0}, 16, v0")
    A(f"v_cmp_eq_u32 vcc, 0, v{t0}")
    kv_lane_offsets(A, ka0, ka1, t0, t1)
    A(f"v_lshlrev_b32 v{l16}, 4, v0")
    kvr = V.get(64)
    pq = G.get(64)
    vW = V.get()
    dma_off_128(A, vW, t0, t1, 1024)
    A(f"s_mul_i32 s{sU}, s{sW}, {8*KVH}")
    A(f"s_add_u32 s{sU}, s{sU}, {WS_KV}")
    A(f"s_and_b32 s{sTT}, s{sW}, 1")
    A(f"s_lshr_b32 s{sN}, s{sW}, 1")
    sP0, sP1, sWo = S_T0 + 5, S_T0 + 6, S_T0 + 7
    A(f"s_lshl_b32 s{sP0}, s{S_RB}, 1")
    A(f"s_add_u32 s{sP0}, s{sP0}, s{sTT}")
    A(f"s_mov_b32 s{sTT}, s{sP0}")
    A(f"s_lshl_b32 s{sP0}, s{sP0}, 15")
    A(f"s_lshl_b32 s{sT}, s{sW}, 13")
    A(f"s_add_u32 s{sP0}, s{sP0}, s{sT}")
    A(f"s_xor_b32 s{sP1}, s{sP0}, 0x8000")
    A(f"s_lshl_b32 s{sWo}, s{sW}, 17")
    A(f"s_lshl_b32 s{sT}, s{S_C}, 7")
    A(f"s_add_u32 s{sWo}, s{sWo}, s{sT}")
    A(f"s_lshl_b32 s{sL}, s{sW}, 14")
    acc = V.get(64)
    xr = V.get(8)
    A(f"v_and_b32 v{t0}, 31, v0")
    A(f"v_lshrrev_b32 v{t1}, 5, v0")
    A(f"v_lshlrev_b32 v{t1}, 3, v{t1}")
    A(f"v_lshl_add_u32 v{t2}, v{t0}, 10, v{t1}")
    sX = S_T0 + 8
    A(f"s_lshl_b32 s{sX}, s{sTT}, 15")
    A(f"s_lshl_b32 s{sT}, s{S_C}, 7")
    A(f"s_add_u32 s{sX}, s{sX}, s{sT}")
    A(f"s_lshl_b32 s{sT}, s{sN}, 6")
    A(f"s_add_u32 s{sX}, s{sX}, s{sT}")
    for h in range(8):
        o = h * KVH
        A(f"s_add_u32 s{sT}, s{sU}, {o}")
        A(f"buffer_load_dwordx4 {v(kvr+8*h,4)}, v{ka0}, {s(S_WS,4)}, s{sT} offen")
        A(f"buffer_load_dwordx4 {v(kvr+8*h+4,4)}, v{ka1}, {s(S_WS,4)}, s{sT} offen")
        if h == 4:
            A(f"s_add_u32 s{sP0}, s{sP0}, 4096")
            A(f"s_add_u32 s{sP1}, s{sP1}, 4096")
        A(f"buffer_load_dwordx4 {a_(pq+8*h,4)}, v{l16}, {s(S_WS,4)}, s{sP0} offen offset:{(h%4)*1024}")
        A(f"buffer_load_dwordx4 {a_(pq+8*h+4,4)}, v{l16}, {s(S_WS,4)}, s{sP1} offen offset:{(h%4)*1024}")
        for j in range(2):
            A(f"s_add_u32 m0, s{sL}, {h*2048 + j*1024}")
            A(f"s_add_u32 s{sT}, s{sWo}, {(h*16 + j*8)*1024}")
            A(f"buffer_load_dwordx4 v{vW}, {s(S_WO,4)}, s{sT} offen lds", tag=f"w{h}")
        if h == 0:
            for g in range(4):
                A(f"buffer_load_dwordx2 {v(xr+2*g,2)}, v{t2}, {s(S_X,4)}, s{sX} offen offset:{g*16}")
    wb0, wb1 = V.get(), V.get()
    tr_base_128(A, wb0, t0, t1, t2, sN)
    A(f"v_add_u32 v{wb0}, s{sL}, v{wb0}")
    A(f"v_xor_b32 v{wb1}, 64, v{wb0}")
    d = V.get(64)
    of = V.get(8)
    wf = V.get(16)
    rc = V.get(2)

    def kvcvt(h):
        for k in range(4):
            A(f"v_cvt_pk_bf16_f32 v{kvr+8*h+k}, v{kvr+8*h+2*k}, v{kvr+8*h+2*k+1}")

    def omf(h, t):
        A(f"{MF} {v(d+32*(h%2)+16*t,16)}, {v(kvr+8*h,4)}, {a_(pq+8*h+4*t,4)}, 0")

    def wread(h):
        A.wait_tag(f"w{h}")
        for n, b in enumerate((wb0, wb1)):
            for jj in range(2):
                A(f"ds_read_b64_tr_b16 {v(wf+8*(h%2)+4*n+2*jj,2)}, v{b} offset:{h*2048 + jj*1024}")

    def ovalu(h, t):
        dd = d + 32 * (h % 2) + 16 * t
        A(f"v_add_f32 v{rc+t}, {hx(1e-6)}, v{dd}")
        A(f"v_rcp_f32 v{rc+t}, v{rc+t}")
        for k in range(8):
            A(f"v_mul_f32 v{dd+8+k}, v{rc+t}, v{dd+8+k}")
        for k in range(4):
            A(f"v_cvt_pk_bf16_f32 v{of+4*t+k}, v{dd+8+2*k}, v{dd+9+2*k}")

    kvcvt(0)
    omf(0, 0)
    omf(0, 1)
    wread(0)
    for g in range(4):
        for k in range(2):
            A(f"v_lshlrev_b32 v{acc+4*g+2*k}, 16, v{xr+2*g+k}")
            A(f"v_and_b32 v{acc+4*g+2*k+1}, 0xffff0000, v{xr+2*g+k}")
    for h in range(8):
        if h + 1 < 8:
            kvcvt(h + 1)
            omf(h + 1, 0)
        ovalu(h, 0)
        if h + 1 < 8:
            omf(h + 1, 1)
            wread(h + 1)
        for n in range(2):
            j = 2 * n
            A(f"{MF} {v(acc+16*j,16)}, {v(wf+8*(h%2)+4*n,4)}, {v(of,4)}, {'0' if (h == 0 and j) else v(acc+16*j,16)}")
        ovalu(h, 1)
        for n in range(2):
            j = 2 * n + 1
            A(f"{MF} {v(acc+16*j,16)}, {v(wf+8*(h%2)+4*n,4)}, {v(of+4,4)}, {'0' if h == 0 else v(acc+16*j,16)}")
    for j in range(1, 4):
        A(f"s_xor_b32 s{sT}, s{sW}, {j}")
        A(f"s_mul_i32 s{sT}, s{sT}, 12288")
        A(f"s_add_u32 s{sT}, s{sT}, {LRED + (j-1)*4096}")
        A(f"v_add_u32 v{t0}, s{sT}, v{l16}")
        for q in range(4):
            A(f"ds_write_b128 v{t0}, {v(acc+16*j+4*q,4)} offset:{q*1024}")
    A.barrier()
    A(f"s_mul_i32 s{sT}, s{sW}, 12288")
    A(f"s_add_u32 s{sT}, s{sT}, {LRED}")
    A(f"v_add_u32 v{t0}, s{sT}, v{l16}")
    for j in range(1, 4):
        for q in range(4):
            A(f"ds_read_b128 {v(acc+16*j+4*q,4)}, v{t0} offset:{(j-1)*4096 + q*1024}")
    for j in range(1, 4):
        for p in range(8):
            A(f"v_pk_add_f32 {v(acc+2*p,2)}, {v(acc+2*p,2)}, {v(acc+16*j+2*p,2)}")
    for p in range(8):
        A(f"v_cvt_pk_bf16_f32 v{of+p}, v{acc+2*p}, v{acc+2*p+1}")
    A(f"s_lshl_b32 s{sT}, s{S_C}, 1")
    A(f"s_add_u32 s{sT}, s{sT}, s{sN}")
    A(f"s_lshl_b32 s{sU}, s{sTT}, 4")
    A(f"s_add_u32 s{sU}, s{sU}, s{sT}")
    A(f"s_lshl_b32 s{sT}, s{sU}, 11")
    A(f"s_add_u32 s{sT}, s{sT}, {WS_H}")
    A(f"buffer_store_dwordx4 {v(of,4)}, v{l16}, {s(S_WS,4)}, s{sT} offen")
    A(f"buffer_store_dwordx4 {v(of+4,4)}, v{l16}, {s(S_WS,4)}, s{sT} offen offset:1024")
    st = V.get(4)
    A(f"v_mov_b32 v{st}, 0")
    A(f"v_mov_b32 v{st+1}, 0")
    for p in range(8):
        A(f"v_dot2c_f32_bf16 v{st}, s{S_ONES}, v{of+p}")
        A(f"v_dot2c_f32_bf16 v{st+1}, v{of+p}, v{of+p}")
    A(f"v_mov_b32 v{st+2}, v{st}")
    A(f"v_mov_b32 v{st+3}, v{st+1}")
    A(f"v_permlane32_swap_b32 v{st}, v{st+2}")
    A(f"v_permlane32_swap_b32 v{st+1}, v{st+3}")
    A(f"v_add_f32 v{st}, v{st}, v{st+2}")
    A(f"v_add_f32 v{st+1}, v{st+1}, v{st+3}")
    A(f"s_lshl_b32 s{sT}, s{sU}, 8")
    A(f"s_add_u32 s{sT}, s{sT}, {WS_HST}")
    A(f"v_and_b32 v{t0}, 31, v0")
    A(f"v_lshlrev_b32 v{t0}, 3, v{t0}")
    A(f"buffer_store_dwordx2 {v(st,2)}, v{t0}, {s(S_WS,4)}, s{sT} offen")


def phase_C(A, V, G, name):
    sW = S_WAVE
    sT, sU, sL, sTT, sT0 = S_T0, S_T0 + 1, S_T0 + 2, S_T0 + 3, S_T0 + 4
    t0, t1, t2 = V.get(), V.get(), V.get()
    LCS = 98304
    A(f"s_lshr_b32 s{sU}, s2, 3")
    A(f"s_and_b32 s{sU}, s{sU}, 15")
    A(f"s_cmp_eq_u32 s{sU}, 15")
    A(f"s_cbranch_scc1 L_end_{name}")
    A(f"s_mul_i32 s{sT0}, s{sU}, 3")
    A(f"s_min_u32 s{sT0}, s{sT0}, 40")
    A(f"s_and_b32 s{sTT}, s2, 7")
    A(f"s_lshl_b32 s{sTT}, s{sTT}, 1")
    A(f"s_lshr_b32 s{sT}, s2, 7")
    A(f"s_add_u32 s{sTT}, s{sTT}, s{sT}")
    A(f"s_lshl_b32 s{sTT}, s{sTT}, 2")
    A(f"s_add_u32 s{sTT}, s{sTT}, s{sW}")
    vW = V.get(3, 1)
    for i in range(3):
        A(f"v_add_u32 v{t0}, {64*i}, v0")
        A(f"v_mul_u32_u24 v{t1}, 5462, v{t0}")
        A(f"v_lshrrev_b32 v{t1}, 16, v{t1}")
        A(f"v_mul_u32_u24 v{t2}, 12, v{t1}")
        A(f"v_sub_u32 v{t0}, v{t0}, v{t2}")
        A(f"v_mul_u32_u24 v{t1}, 2752, v{t1}")
        A(f"v_lshl_add_u32 v{vW+i}, v{t0}, 4, v{t1}")
    l16 = V.get()
    A(f"v_lshlrev_b32 v{l16}, 4, v0")
    sWo, sH = S_T0 + 5, S_T0 + 6
    A(f"s_mul_i32 s{sWo}, s{sW}, {16*2752}")
    A(f"s_lshl_b32 s{sT}, s{sT0}, 6")
    A(f"s_add_u32 s{sWo}, s{sWo}, s{sT}")
    A(f"s_mul_i32 s{sL}, s{sW}, 3072")
    A(f"s_lshl_b32 s{sH}, s{sTT}, 15")
    A(f"s_add_u32 s{sH}, s{sH}, {WS_H}")
    hf = G.get(128)
    stt = V.get(16)
    b1 = V.get(3, 1)
    for grp in range(8):
        for i in range(3):
            A(f"s_add_u32 m0, s{sL}, {grp*12288 + i*1024}")
            A(f"s_add_u32 s{sT}, s{sWo}, {grp*64*2752}")
            A(f"buffer_load_dwordx4 v{vW+i}, {s(S_W1,4)}, s{sT} offen lds", tag=f"w{grp}")
        for k in range(4):
            A(f"buffer_load_dwordx4 {a_(hf+16*grp+4*k,4)}, v{l16}, {s(S_WS,4)}, s{sH} offen offset:{k*1024}")
        A(f"s_add_u32 s{sH}, s{sH}, 4096")
    wb, wb2 = V.get(), V.get()
    A(f"v_bfe_u32 v{t0}, v0, 2, 2")
    A(f"v_lshrrev_b32 v{t1}, 5, v0")
    A(f"v_lshl_add_u32 v{t1}, v{t1}, 2, v{t0}")
    A(f"v_mul_u32_u24 v{t1}, 192, v{t1}")
    A(f"v_and_b32 v{t2}, 3, v0")
    A(f"v_lshl_add_u32 v{t1}, v{t2}, 3, v{t1}")
    A(f"v_bfe_u32 v{t2}, v0, 4, 1")
    A(f"v_lshl_add_u32 v{wb}, v{t2}, 5, v{t1}")
    A(f"v_add_u32 v{wb2}, 49152, v{wb}")
    wo_, wo2 = V.get(), V.get()
    A(f"v_add_u32 v{wo_}, s{sL}, v{wb}")
    A(f"v_add_u32 v{wo2}, 49152, v{wo_}")
    acc = V.get(48)
    wf = V.get(36)
    cf = V.get(12)
    cs = V.get(4)
    for k in range(3):
        A(f"v_mov_b32 v{cs+k}, 0")

    def wread(ks):
        b, off = (wb, ks * 3072) if ks < 16 else (wb2, (ks - 16) * 3072)
        for n in range(3):
            for jj in range(2):
                A(f"ds_read_b64_tr_b16 {v(wf+12*(ks%3)+4*n+2*jj,2)}, v{b} offset:{off + jj*1536 + n*64}")

    for grp in range(8):
        A.wait_tag(f"w{grp}")
        A.barrier()
        if grp == 1:
            A(f"v_and_b32 v{t0}, 31, v0")
            A(f"v_lshrrev_b32 v{t1}, 5, v0")
            A(f"v_lshlrev_b32 v{t2}, 1, v{t0}")
            A(f"v_lshlrev_b32 v{t0}, 3, v{t0}")
            A(f"v_lshl_add_u32 v{t0}, v{t1}, 11, v{t0}")
            A(f"s_lshl_b32 s{sT}, s{sTT}, 12")
            A(f"s_add_u32 s{sT}, s{sT}, {WS_HST}")
            for k in range(8):
                A(f"buffer_load_dwordx2 {v(stt+2*k,2)}, v{t0}, {s(S_WS,4)}, s{sT} offen offset:{k*256}")
            A(f"s_lshl_b32 s{sT}, s{sT0}, 6")
            for n in range(3):
                A(f"buffer_load_ushort v{b1+n}, v{t2}, {s(S_B1,4)}, s{sT} offen offset:{n*64}")
        wread(4 * grp)
        wread(4 * grp + 1)
        for k in range(4):
            ks = 4 * grp + k
            for n in range(3):
                A(f"{MF} {v(acc+16*n,16)}, {v(wf+12*(ks%3)+4*n,4)}, {a_(hf+4*ks,4)}, {'0' if ks == 0 else v(acc+16*n,16)}")
                if n == 0 and k + 2 < 4:
                    wread(ks + 2)
                if n == 0 and k == 2:
                    b, off = (wo_, grp * 12288) if grp < 4 else (wo2, (grp - 4) * 12288)
                    for nn in range(3):
                        for jj in range(2):
                            A(f"ds_read_b64_tr_b16 {v(cf+4*nn+2*jj,2)}, v{b} offset:{off + jj*1536 + nn*64}")
        for k in range(12):
            A(f"v_dot2c_f32_bf16 v{cs+k//4}, s{S_ONES}, v{cf+k}")
    A(f"s_lshl_b32 s{sT}, s{sW}, 10")
    A(f"s_add_u32 s{sT}, s{sT}, {LCS}")
    A(f"v_add_u32 v{t0}, s{sT}, v{l16}")
    A(f"ds_write_b128 v{t0}, {v(cs,4)}")
    for k in range(1, 8):
        A(f"v_pk_add_f32 {v(stt,2)}, {v(stt,2)}, {v(stt+2*k,2)}")
    A(f"v_mov_b32 v{stt+2}, v{stt}")
    A(f"v_mov_b32 v{stt+3}, v{stt+1}")
    A(f"v_permlane32_swap_b32 v{stt}, v{stt+2}")
    A(f"v_permlane32_swap_b32 v{stt+1}, v{stt+3}")
    A(f"v_add_f32 v{stt}, v{stt}, v{stt+2}")
    A(f"v_add_f32 v{stt+1}, v{stt+1}, v{stt+3}")
    A.barrier()
    A(f"v_add_u32 v{t0}, {LCS}, v{l16}")
    for k in range(4):
        A(f"ds_read_b128 {v(wf+4*k,4)}, v{t0} offset:{k*1024}")
    mean, var, rs, sd = stt, stt + 1, stt + 4, stt + 6
    A(f"v_mul_f32 v{mean}, {hx(1/512)}, v{mean}")
    A(f"v_mul_f32 v{t1}, v{mean}, v{mean}")
    A(f"v_mul_f32 v{var}, {hx(1/512)}, v{var}")
    A(f"v_sub_f32 v{var}, v{var}, v{t1}")
    A(f"v_max_f32 v{var}, 0, v{var}")
    A(f"v_add_f32 v{var}, {hx(1e-5)}, v{var}")
    A(f"v_rsq_f32 v{rs}, v{var}")
    A(f"v_mul_f32 v{sd}, v{var}, v{rs}")
    augx = V.get(4)
    split_hilo(A, augx, augx + 1, mean, t1, neg=True)
    pack_hl(A, augx + 2, sd, t1)
    A(f"v_lshrrev_b32 v{t1}, 16, v{augx+2}")
    A(f"v_and_b32 v{augx+2}, 0xffff, v{augx+2}")
    A(f"v_cmp_lt_u32 vcc, 31, v0")
    A(f"v_cndmask_b32 v{augx+2}, v{augx+2}, v{t1}, vcc")
    A(f"v_mov_b32 v{augx+3}, 0")
    for k in range(1, 4):
        for n in range(3):
            A(f"v_add_f32 v{wf+n}, v{wf+n}, v{wf+4*k+n}")
    aw = cf
    for n in range(3):
        pack_hl(A, aw + 4 * n, wf + n, t1)
        A(f"v_mov_b32 v{aw+4*n+1}, v{aw+4*n}")
        A(f"v_mov_b32 v{aw+4*n+2}, v{b1+n}")
        A(f"v_mov_b32 v{aw+4*n+3}, 0")
    for n in range(3):
        A(f"{MF} {v(acc+16*n,16)}, {v(aw+4*n,4)}, {v(augx,4)}, {v(acc+16*n,16)}")
    c1 = -2.0 * 0.7978845608028654 * LOG2E
    c2 = c1 * 0.044715
    k1, k2 = stt + 8, stt + 10
    A(f"v_mul_f32 v{k1}, {hx(c1)}, v{rs}")
    A(f"v_mul_f32 v{k2}, v{rs}, v{rs}")
    A(f"v_mul_f32 v{k2}, v{k2}, v{rs}")
    A(f"v_mul_f32 v{k2}, {hx(c2)}, v{k2}")
    A(f"s_mul_i32 s{sU}, s{sTT}, 86")
    A(f"s_lshl_b32 s{sT}, s{sT0}, 1")
    A(f"s_add_u32 s{sU}, s{sU}, s{sT}")
    A(f"s_lshl_b32 s{sU}, s{sU}, 10")
    A(f"s_add_u32 s{sU}, s{sU}, {WS_HID}")
    u = wf + 16
    o = wf
    for n in range(3):
        ob = o + 8 * (n % 2)
        for p in range(8):
            a = acc + 16 * n + 2 * p
            uu = u + 2 * (p % 2)
            A(f"v_pk_mul_f32 {v(uu,2)}, {v(a,2)}, {v(a,2)}")
            A(f"v_pk_fma_f32 {v(uu,2)}, {v(uu,2)}, {v(k2,2)}, {v(k1,2)} op_sel_hi:[1,0,0]")
            A(f"v_pk_mul_f32 {v(uu,2)}, {v(uu,2)}, {v(a,2)}")
            A(f"v_exp_f32 v{uu}, v{uu}")
            A(f"v_exp_f32 v{uu+1}, v{uu+1}")
            A(f"v_pk_fma_f32 {v(uu,2)}, {v(uu,2)}, {v(sd,2)}, {v(sd,2)} op_sel_hi:[1,0,0]")
            A(f"v_rcp_f32 v{uu}, v{uu}")
            A(f"v_rcp_f32 v{uu+1}, v{uu+1}")
            A(f"v_pk_mul_f32 {v(a,2)}, {v(a,2)}, {v(uu,2)}")
            A(f"v_cvt_pk_bf16_f32 v{ob+p}, v{a}, v{a+1}")
        if n == 2:
            A(f"s_add_u32 s{sU}, s{sU}, 4096")
        A(f"buffer_store_dwordx4 {v(ob,4)}, v{l16}, {s(S_WS,4)}, s{sU} offen offset:{(n%2)*2048}")
        A(f"buffer_store_dwordx4 {v(ob+4,4)}, v{l16}, {s(S_WS,4)}, s{sU} offen offset:{(n%2)*2048+1024}")


def phase_D(A, V, G, name):
    sW = S_WAVE
    sT, sU, sL, sTT, sN = S_T0, S_T0 + 1, S_T0 + 2, S_T0 + 3, S_T0 + 4
    sH0, sH1, sWo = S_T0 + 5, S_T0 + 6, S_T0 + 7
    t0, t1, t2 = V.get(), V.get(), V.get()
    NS, RING, LA = 22, 16, 13
    l16, vW = V.get(), V.get()
    A(f"v_lshlrev_b32 v{l16}, 4, v0")
    dma_off_128(A, vW, t0, t1, 1024)
    A(f"s_and_b32 s{sTT}, s{sW}, 1")
    A(f"s_lshr_b32 s{sN}, s{sW}, 1")
    A(f"s_lshl_b32 s{sT}, s{S_RB}, 1")
    A(f"s_add_u32 s{sTT}, s{sTT}, s{sT}")
    A(f"s_mul_i32 s{sU}, s{sW}, {NS*1024}")
    A(f"s_add_u32 s{sU}, s{sU}, {WS_HID}")
    A(f"s_mul_i32 s{sH0}, s{sTT}, {86*1024}")
    A(f"s_add_u32 s{sH0}, s{sH0}, s{sU}")
    A(f"s_xor_b32 s{sT}, s{sTT}, 1")
    A(f"s_mul_i32 s{sH1}, s{sT}, {86*1024}")
    A(f"s_add_u32 s{sH1}, s{sH1}, s{sU}")
    A(f"s_mul_i32 s{sWo}, s{sW}, {NS*16*1024}")
    A(f"s_lshl_b32 s{sT}, s{S_C}, 7")
    A(f"s_add_u32 s{sWo}, s{sWo}, s{sT}")
    A(f"s_lshl_b32 s{sL}, s{sW}, 15")
    acc = V.get(64)
    hr = V.get(8)
    b2 = V.get(8)
    A(f"s_lshl_b32 s{sT}, s{S_C}, 1")
    A(f"s_add_u32 s{sT}, s{sT}, s{sN}")
    A(f"s_lshl_b32 s{sU}, s{sTT}, 4")
    A(f"s_add_u32 s{sU}, s{sU}, s{sT}")
    A(f"s_lshl_b32 s{sU}, s{sU}, 11")
    A(f"s_add_u32 s{sU}, s{sU}, {WS_H}")
    A(f"buffer_load_dwordx4 {v(hr,4)}, v{l16}, {s(S_WS,4)}, s{sU} offen")
    A(f"buffer_load_dwordx4 {v(hr+4,4)}, v{l16}, {s(S_WS,4)}, s{sU} offen offset:1024")
    A(f"s_lshl_b32 s{sT}, s{sT}, 6")
    A(f"v_lshrrev_b32 v{t2}, 5, v0")
    A(f"v_lshlrev_b32 v{t2}, 3, v{t2}")
    for g in range(4):
        A(f"buffer_load_dwordx2 {v(b2+2*g,2)}, v{t2}, {s(S_B2,4)}, s{sT} offen offset:{g*16}")
    hf = G.get(8 * RING)

    def issue(ks):
        for j in range(2):
            A(f"s_add_u32 m0, s{sL}, {(ks%RING)*2048 + j*1024}")
            A(f"s_add_u32 s{sT}, s{sWo}, {(ks*16 + j*8)*1024}")
            A(f"buffer_load_dwordx4 v{vW}, {s(S_W2,4)}, s{sT} offen lds", tag=f"w{ks}")
        r = hf + 8 * (ks % RING)
        A(f"buffer_load_dwordx4 {a_(r,4)}, v{l16}, {s(S_WS,4)}, s{sH0} offen offset:{(ks%4)*1024}")
        A(f"buffer_load_dwordx4 {a_(r+4,4)}, v{l16}, {s(S_WS,4)}, s{sH1} offen offset:{(ks%4)*1024}")
        if ks % 4 == 3:
            A(f"s_add_u32 s{sH0}, s{sH0}, 4096")
            A(f"s_add_u32 s{sH1}, s{sH1}, 4096")

    for ks in range(LA):
        issue(ks)
    wb0, wb1 = V.get(), V.get()
    tr_base_128(A, wb0, t0, t1, t2, sN)
    A(f"v_add_u32 v{wb0}, s{sL}, v{wb0}")
    A(f"v_xor_b32 v{wb1}, 64, v{wb0}")
    for p in range(8):
        A(f"v_lshlrev_b32 v{acc+2*p}, 16, v{hr+p}")
        A(f"v_and_b32 v{acc+2*p+1}, 0xffff0000, v{hr+p}")
        A(f"v_lshlrev_b32 v{t0}, 16, v{b2+p}")
        A(f"v_and_b32 v{t1}, 0xffff0000, v{b2+p}")
        A(f"v_add_f32 v{acc+2*p}, v{acc+2*p}, v{t0}")
        A(f"v_add_f32 v{acc+2*p+1}, v{acc+2*p+1}, v{t1}")
    wf = V.get(16)

    def wread(ks):
        A.wait_tag(f"w{ks}")
        for n, b in enumerate((wb0, wb1)):
            for jj in range(2):
                A(f"ds_read_b64_tr_b16 {v(wf+8*(ks%2)+4*n+2*jj,2)}, v{b} offset:{(ks%RING)*2048 + jj*1024}")

    def step(ks):
        r = hf + 8 * (ks % RING)
        for j in range(4):
            n, t = j >> 1, j & 1
            A(f"{MF} {v(acc+16*j,16)}, {v(wf+8*(ks%2)+4*n,4)}, {a_(r+4*t,4)}, {'0' if (ks == 0 and j) else v(acc+16*j,16)}")
            if j == 0 and ks + 1 < NS:
                wread(ks + 1)

    wread(0)
    for ks in range(NS):
        if ks == NS - 2:
            A.wait(vm=0, lg=0)
            A(f"s_cmp_eq_u32 s{sW}, 3")
            A(f"s_cbranch_scc1 L_dskip_{name}")
            A.cond_begin()
        step(ks)
        if ks + LA < NS:
            issue(ks + LA)
    A.cond_end()
    A.label(f"L_dskip_{name}")
    A.barrier()
    A(f"v_and_b32 v{t0}, 31, v0")
    A(f"v_lshrrev_b32 v{t1}, 5, v0")
    A(f"v_and_b32 v{t2}, 7, v0")
    A(f"v_xor_b32 v{t1}, v{t1}, v{t2}")
    A(f"v_lshlrev_b32 v{t1}, 4, v{t1}")
    A(f"v_lshl_add_u32 v{t1}, v{t0}, 8, v{t1}")
    A(f"s_lshl_b32 s{sT}, s{sW}, 14")
    A(f"s_and_b32 s{sU}, s{sW}, 1")
    A(f"s_lshl_b32 s{sU}, s{sU}, 13")
    A(f"s_add_u32 s{sT}, s{sT}, s{sU}")
    A(f"s_lshl_b32 s{sU}, s{sN}, 7")
    A(f"s_add_u32 s{sT}, s{sT}, s{sU}")
    A(f"v_add_u32 v{t1}, s{sT}, v{t1}")
    wa = wf
    for j in range(4):
        for g in range(4):
            x = ((j & 1) << 13) | ((j >> 1) << 7) | (g << 5)
            A(f"v_xor_b32 v{wa+4*j+g}, {x}, v{t1}")
    for j in range(4):
        for g in range(4):
            A(f"ds_write_b128 v{wa+4*j+g}, {v(acc+16*j+4*g,4)}")
    A.barrier()
    A(f"v_lshrrev_b32 v{t0}, 3, v0")
    A(f"v_and_b32 v{t1}, 7, v0")
    A(f"v_lshlrev_b32 v{t2}, 1, v{t1}")
    A(f"v_xor_b32 v{t2}, v{t2}, v{t0}")
    A(f"v_lshlrev_b32 v{t2}, 4, v{t2}")
    A(f"v_lshl_add_u32 v{t2}, v{t0}, 8, v{t2}")
    A(f"s_lshl_b32 s{sT}, s{sW}, 12")
    A(f"v_add_u32 v{t2}, s{sT}, v{t2}")
    A(f"v_xor_b32 v{wa}, 16, v{t2}")
    for ps in range(2):
        for src in range(4):
            A(f"ds_read_b128 {v(acc+32*ps+8*src,4)}, v{t2} offset:{src*16384 + ps*2048}")
            A(f"ds_read_b128 {v(acc+32*ps+8*src+4,4)}, v{wa} offset:{src*16384 + ps*2048}")
    A(f"v_lshlrev_b32 v{t1}, 4, v{t1}")
    A(f"v_lshl_add_u32 v{t1}, v{t0}, 10, v{t1}")
    A(f"s_lshl_b32 s{sT}, s{S_RB}, 16")
    A(f"s_lshl_b32 s{sU}, s{sW}, 14")
    A(f"s_add_u32 s{sT}, s{sT}, s{sU}")
    A(f"s_lshl_b32 s{sU}, s{S_C}, 7")
    A(f"s_add_u32 s{sT}, s{sT}, s{sU}")
    for ps in range(2):
        b = acc + 32 * ps
        for src in range(1, 4):
            for p in range(4):
                A(f"v_pk_add_f32 {v(b+2*p,2)}, {v(b+2*p,2)}, {v(b+8*src+2*p,2)}")
        for p in range(4):
            A(f"v_cvt_pk_bf16_f32 v{hr+4*ps+p}, v{b+2*p}, v{b+2*p+1}")
        A(f"buffer_store_dwordx4 {v(hr+4*ps,4)}, v{t1}, {s(S_OUT,4)}, s{sT} offen")
        A(f"s_add_u32 s{sT}, s{sT}, 8192")


def gen(extra_empty=0):
    A = Asm()
    A.raw(HDR.rstrip())
    A.raw("; @launch kernel=z_kernel grid=(9,1,1) block=(256,1,1) lds=0")
    A.raw("; @launch kernel=a_kernel grid=(256,1,1) block=(256,1,1) lds=163840")
    A.raw("; @launch kernel=b_kernel grid=(256,1,1) block=(256,1,1) lds=114688")
    A.raw("; @launch kernel=c_kernel grid=(256,1,1) block=(256,1,1) lds=102400")
    A.raw("; @launch kernel=d_kernel grid=(256,1,1) block=(256,1,1) lds=131072")
    for k in range(extra_empty):
        A.raw("; @launch kernel=e_kernel grid=(256,1,1) block=(256,1,1) lds=0")
    A.raw('.amdgcn_target "amdgcn-amd-amdhsa--gfx950"\n.text')
    kernel_Z(A)
    for name, need, fn in (("a_kernel", [S_X, S_WQKV, S_WS], lambda V, G: phase_A(A, V, G)),
                           ("b_kernel", [S_X, S_WO, S_WS], lambda V, G: phase_B(A, V, G)),
                           ("c_kernel", [S_W1, S_B1, S_WS], lambda V, G: phase_C(A, V, G, "c_kernel")),
                           ("d_kernel", [S_W2, S_B2, S_OUT, S_WS], lambda V, G: phase_D(A, V, G, "d_kernel"))):
        V, G = Alloc("v", 2, 255), Alloc("a", 0, 255)
        prologue(A, name, need)
        fn(V, G)
        epilogue(A, name, V.peak, G.peak)
    if extra_empty:
        prologue(A, "e_kernel", [])
        epilogue(A, "e_kernel", 8, 0)
    return A.text()


if __name__ == "__main__":
    out = sys.argv[1] if len(sys.argv) > 1 else "cdna_kernels/" + NAME + ".s"
    n = int(sys.argv[2]) if len(sys.argv) > 2 else 0
    open(out, "w").write(gen(n))
    print("wrote", out)
```

```python
import sys
from asmgen import *

NAME = "sequential_preLN__linear_attn_block__dense_activation_gelu__prompt"
HDR = open("cdna_kernels/" + NAME + ".s.ref").read().split("; Override launch")[0]

WS_PQ = 0
WS_H = 2 << 20
WS_HID = 4 << 20
WS_KV = 10 << 20
WS_HST = 11 << 20
WS_SIZE = 12 << 20
KVH = 1088
LOG2E = 1.4426950408889634
import struct


def f2u(x):
    return struct.unpack("<I", struct.pack("<f", x))[0]


def hx(x):
    return f"0x{f2u(x):08x}"


MF = "v_mfma_f32_32x32x16_bf16"

S_X, S_WQKV, S_WO, S_W1, S_B1, S_W2, S_B2, S_OUT, S_DBG, S_WS = 8, 12, 16, 20, 24, 28, 32, 36, 40, 44
SIZES = {S_X: 2 << 20, S_WQKV: 512 * 1536 * 2, S_WO: 512 * 512 * 2, S_W1: 512 * 1376 * 2, S_B1: 1376 * 2,
         S_W2: 1376 * 512 * 2, S_B2: 1024, S_OUT: 2 << 20, S_DBG: 256, S_WS: WS_SIZE}
KOFF = {S_X: 0, S_WQKV: 8, S_WO: 16, S_W1: 32, S_B1: 40, S_W2: 48, S_B2: 56, S_OUT: 64, S_DBG: 72, S_WS: 80}
S_WAVE, S_RB, S_C, S_ONES = 48, 49, 50, 51
S_T0 = 52


STAMP = False
WS_STAMP = (11 << 20) + (512 << 10)
S_ST = 80


def stamp(A, k):
    if STAMP:
        A(f"s_memrealtime s[{S_ST+2*k}:{S_ST+2*k+1}]")


def stamp_flush(A, kidx, n):
    if not STAMP:
        return
    A("s_waitcnt vmcnt(0) lgkmcnt(0)")
    A(f"s_memrealtime s[{S_ST+2*n}:{S_ST+2*n+1}]")
    A("s_waitcnt lgkmcnt(0)")
    A(f"s_lshl_b32 s{S_T0}, s2, 2")
    A(f"s_add_u32 s{S_T0}, s{S_T0}, s{S_WAVE}")
    A(f"s_lshl_b32 s{S_T0}, s{S_T0}, 6")
    A(f"s_add_u32 s{S_T0}, s{S_T0}, {WS_STAMP + kidx*65536}")
    A("v_mov_b32 v1, 0")
    A("s_mov_b64 exec, 1")
    for k in range(n + 1):
        A(f"v_mov_b32 v2, s{S_ST+2*k}")
        A(f"buffer_store_dword v2, v1, {s(S_WS,4)}, s{S_T0} offen offset:{4*k}")


def prologue(A, name, need, nwg=256):
    A.raw(f".globl {name}\n.p2align 8\n.type {name},@function\n{name}:")
    stamp(A, 0)
    A(f"s_cmp_ge_u32 s2, {nwg}")
    A(f"s_cbranch_scc1 L_end_{name}")
    for r in need:
        A(f"s_load_dwordx2 {s(r,2)}, s[0:1], {KOFF[r]}")
    A("v_lshrrev_b32 v1, 6, v0")
    A(f"v_readfirstlane_b32 s{S_WAVE}, v1")
    A("v_and_b32 v0, 63, v0")
    for r in need:
        A(f"s_mov_b32 s{r+2}, {SIZES[r]}")
        A(f"s_mov_b32 s{r+3}, 0x20000")
    A(f"s_and_b32 s{S_RB}, s2, 7")
    A(f"s_lshl_b32 s{S_RB}, s{S_RB}, 2")
    A(f"s_lshr_b32 s{S_T0}, s2, 6")
    A(f"s_add_u32 s{S_RB}, s{S_RB}, s{S_T0}")
    A(f"s_lshr_b32 s{S_C}, s2, 3")
    A(f"s_and_b32 s{S_C}, s{S_C}, 7")
    A(f"s_mov_b32 s{S_ONES}, 0x3f803f80")


def epilogue(A, name, nv, na):
    A.label(f"L_end_{name}")
    A("s_endpgm")
    nvv = (nv + 3) // 4 * 4
    tot = nvv + na if na else nv
    A.raw(f""".section .rodata,"a"
.p2align 6
.amdhsa_kernel {name}
  .amdhsa_next_free_vgpr {tot}
  .amdhsa_next_free_sgpr 102
  .amdhsa_accum_offset {nvv}
  .amdhsa_group_segment_fixed_size 0
  .amdhsa_kernarg_size 88
  .amdhsa_user_sgpr_count 2
  .amdhsa_user_sgpr_kernarg_segment_ptr 1
  .amdhsa_system_sgpr_workgroup_id_x 1
.end_amdhsa_kernel
.text""")
    A.vm, A.lg, A.hist = [], [], []


def dma(A, voff, srd, soff, ldsaddr_s, tag, flags=""):
    A(f"s_mov_b32 m0, {ldsaddr_s}")
    A(f"buffer_load_dwordx4 v{voff}, {s(srd,4)}, {soff} offen {flags} lds", tag=tag)


def split_hilo(A, dst_hh, dst_ll, src, tmp, neg=False):
    n = "-" if neg else ""
    A(f"v_cvt_pk_bf16_f32 v{dst_hh}, {n}v{src}, {n}v{src}")
    A(f"v_and_b32 v{tmp}, 0xffff0000, v{dst_hh}")
    A(f"v_sub_f32 v{tmp}, {n}v{src}, v{tmp}" if not neg else f"v_sub_f32_e64 v{tmp}, -v{src}, v{tmp}")
    A(f"v_cvt_pk_bf16_f32 v{dst_ll}, v{tmp}, v{tmp}")


def pack_hl(A, dst, src, tmp):
    A(f"v_cvt_pk_bf16_f32 v{tmp}, v{src}, v{src}")
    A(f"v_and_b32 v{tmp}, 0xffff0000, v{tmp}")
    A(f"v_sub_f32 v{dst}, v{src}, v{tmp}")
    A(f"v_cvt_pk_bf16_f32 v{dst}, v{tmp}, v{dst}")


def kernel_Z(A):
    name = "z_kernel"
    prologue(A, name, [S_WS], nwg=9)
    A(f"s_lshl_b32 s{S_T0}, s2, 2")
    A(f"s_add_u32 s{S_T0}, s{S_T0}, s{S_WAVE}")
    A(f"s_lshl_b32 s{S_T0}, s{S_T0}, 10")
    A(f"s_add_u32 s{S_T0}, s{S_T0}, {WS_KV}")
    A("v_lshlrev_b32 v1, 4, v0")
    for r in range(4, 8):
        A(f"v_mov_b32 v{r}, 0")
    A(f"buffer_store_dwordx4 v[4:7], v1, {s(S_WS,4)}, s{S_T0} offen")
    epilogue(A, name, 8, 0)


def phase_A(A, V, G):
    LX, LK, LV_, LS = 0, 49152, 98304, 147456
    sW = S_WAVE
    t0, t1, t2 = V.get(), V.get(), V.get()
    vX, vK, vVv, vQ = V.get(), V.get(), V.get(), V.get()
    A(f"v_lshrrev_b32 v{t0}, 4, v0")
    A(f"s_lshl_b32 s{S_T0}, s{sW}, 2")
    A(f"v_add_u32 v{t0}, s{S_T0}, v{t0}")
    A(f"v_and_b32 v{t1}, 15, v0")
    A(f"v_xor_b32 v{t1}, v{t1}, v{t0}")
    A(f"v_lshlrev_b32 v{t1}, 4, v{t1}")
    A(f"v_lshl_add_u32 v{vX}, v{t0}, 10, v{t1}")
    A(f"v_lshrrev_b32 v{t0}, 3, v0")
    A(f"v_mul_u32_u24 v{t2}, 3072, v{t0}")
    A(f"v_and_b32 v{t0}, 2, v{t0}")
    A(f"v_and_b32 v{t1}, 7, v0")
    A(f"v_xor_b32 v{vK}, v{t1}, v{t0}")
    A(f"v_xor_b32 v{vVv}, 4, v{vK}")
    A(f"v_lshlrev_b32 v{t0}, 1, v{t0}")
    A(f"v_xor_b32 v{vQ}, v{t1}, v{t0}")
    for r in (vK, vVv, vQ):
        A(f"v_lshl_add_u32 v{r}, v{r}, 4, v{t2}")
    sXo, sWo, sL, sL2, sT = S_T0 + 1, S_T0 + 2, S_T0 + 3, S_T0 + 4, S_T0 + 5
    A(f"s_lshl_b32 s{sXo}, s{S_RB}, 16")
    A(f"s_lshl_b32 s{sWo}, s{S_C}, 7")
    A(f"s_mul_i32 s{sT}, s{sW}, {32*3072}")
    A(f"s_add_u32 s{sWo}, s{sWo}, s{sT}")
    A(f"s_lshl_b32 s{sL}, s{sW}, 10")
    A(f"s_lshl_b32 s{sL2}, s{sW}, 12")

    def load_x(kc, slot):
        for j in range(4):
            A(f"s_add_u32 m0, s{sL}, {LX + slot*16384 + j*4096}")
            A(f"s_add_u32 s{sT}, s{sXo}, {j*16384 + kc*256}")
            A(f"buffer_load_dwordx4 v{vX}, {s(S_X,4)}, s{sT} offen lds", tag=f"c{kc}")

    def load_w(voff, colbase, kc, lds, tag):
        for j in range(4):
            A(f"s_add_u32 m0, s{sL2}, {lds + j*1024}")
            A(f"s_add_u32 s{sT}, s{sWo}, {(kc*128 + j*8)*3072 + colbase}")
            A(f"buffer_load_dwordx4 v{voff}, {s(S_WQKV,4)}, s{sT} offen lds", tag=tag)

    def load_chunk(kc, slot):
        load_x(kc, slot)
        load_w(vK, 1024, kc, LK + slot * 16384, f"c{kc}")
        load_w(vVv, 2048, kc, LV_ + slot * 16384, f"c{kc}")

    for kc in range(3):
        load_chunk(kc, kc)
    QSLOT = [LX + 16384, LK + 16384, LV_ + 16384, LX + 32768]

    xa = V.get(8, 1)
    xb = V.get(8, 1)
    A(f"v_and_b32 v{t0}, 31, v0")
    A(f"v_lshrrev_b32 v{t1}, 5, v0")
    A(f"v_and_b32 v{t2}, 15, v0")
    A(f"v_xor_b32 v{t1}, v{t1}, v{t2}")
    A(f"v_lshlrev_b32 v{t1}, 4, v{t1}")
    A(f"v_lshl_add_u32 v{t1}, v{t0}, 8, v{t1}")
    A(f"s_and_b32 s{sT}, s{sW}, 1")
    A(f"s_lshl_b32 s{sT}, s{sT}, 13")
    A(f"v_add_u32 v{xa}, s{sT}, v{t1}")
    for k in range(1, 8):
        A(f"v_xor_b32 v{xa+k}, {k*32}, v{xa}")
    for k in range(8):
        A(f"v_xor_b32 v{xb+k}, 0x2000, v{xa+k}")
    wkv, wq, wq2 = V.get(), V.get(), V.get()
    A(f"v_bfe_u32 v{t0}, v0, 2, 2")
    A(f"v_lshrrev_b32 v{t1}, 5, v0")
    A(f"v_lshl_add_u32 v{t1}, v{t1}, 3, v{t0}")
    A(f"v_lshlrev_b32 v{t1}, 7, v{t1}")
    A(f"v_and_b32 v{t2}, 3, v0")
    A(f"v_lshl_add_u32 v{t1}, v{t2}, 3, v{t1}")
    A(f"v_lshrrev_b32 v{t0}, 1, v{t0}")
    A(f"v_bfe_u32 v{t2}, v0, 4, 1")
    A(f"v_lshl_add_u32 v{wkv}, v{t2}, 1, v{t0}")
    A(f"v_xor_b32 v{wkv}, s{sW}, v{wkv}")
    A(f"v_lshl_add_u32 v{wkv}, v{wkv}, 5, v{t1}")
    A(f"v_mul_u32_u24 v{wq2}, {LV_-LK}, v{t2}")
    A(f"v_add_u32 v{wkv}, v{wkv}, v{wq2}")
    A(f"v_add_u32 v{wkv}, {LK}, v{wkv}")
    A(f"s_lshr_b32 s{sT}, s{sW}, 1")
    A(f"v_xor_b32 v{wq}, s{sT}, v{t0}")
    A(f"v_lshl_add_u32 v{wq}, v{wq}, 6, v{t1}")
    A(f"v_lshl_add_u32 v{wq}, v{t2}, 5, v{wq}")
    A(f"v_add_u32 v{wq2}, 0x10000, v{wq}")
    st = V.get(4, 1)
    A(f"v_lshrrev_b32 v{t0}, 2, v0")
    A(f"s_lshl_b32 s{sT}, s{sW}, 4")
    A(f"v_add_u32 v{t1}, s{sT}, v{t0}")
    A(f"v_and_b32 v{t0}, 3, v{t0}")
    A(f"v_and_b32 v{t2}, 3, v0")
    A(f"v_lshl_add_u32 v{t2}, v{t0}, 2, v{t2}")
    A(f"v_lshlrev_b32 v{t2}, 4, v{t2}")
    A(f"v_lshl_add_u32 v{st}, v{t1}, 8, v{t2}")
    for k in range(1, 4):
        A(f"v_xor_b32 v{st+k}, {k*64}, v{st}")
    vrow = V.get()
    A(f"v_mov_b32 v{vrow}, v{t1}")

    acc0, acc1 = V.get(16), V.get(16)
    wf = V.get(32)
    xo = V.get(16)
    sx = V.get(16)
    s1, s2_, cs = V.get(), V.get(), V.get()
    for r in (s1, s2_, cs):
        A(f"v_mov_b32 v{r}, 0")
    xown = G.get(128)

    def reads(kc, slot, ks):
        A(f"ds_read_b128 {a_(xown + (kc*8+ks)*4, 4)}, v{xa+ks} offset:{slot*16384}")
        A(f"ds_read_b64_tr_b16 {v(wf+ks*4,2)}, v{wkv} offset:{slot*16384 + ks*2048}")
        A(f"ds_read_b64_tr_b16 {v(wf+ks*4+2,2)}, v{wkv} offset:{slot*16384 + ks*2048 + 512}")
        A(f"ds_read_b128 {v(xo+(ks%4)*4,4)}, v{xb+ks} offset:{slot*16384}")

    for kc in range(4):
        slot = kc % 3
        A.wait_tag(f"c{kc}")
        A.barrier()
        if kc == 0:
            stamp(A, 1)
        if kc == 1:
            load_chunk(3, 0)
        if kc == 2:
            for q in range(3):
                load_w(vQ, 0, q, QSLOT[q], f"q{q}")
        if kc == 3:
            load_w(vQ, 0, 3, QSLOT[3], "q3")
        for ks in range(3):
            reads(kc, slot, ks)
        for ks in range(8):
            first = kc == 0 and ks == 0
            A(f"{MF} {v(acc0,16)}, {a_(xown+(kc*8+ks)*4,4)}, {v(wf+ks*4,4)}, {'0' if first else v(acc0,16)}")
            A(f"{MF} {v(acc1,16)}, {v(xo+(ks%4)*4,4)}, {v(wf+ks*4,4)}, {'0' if first else v(acc1,16)}")
            if ks + 3 < 8:
                reads(kc, slot, ks + 3)
            if ks == 5:
                for k in range(4):
                    A(f"ds_read_b128 {v(sx+4*k,4)}, v{st+k} offset:{slot*16384}")
        for k in range(32):
            A(f"v_dot2c_f32_bf16 v{cs}, s{S_ONES}, v{wf+k}")
        for k in range(16):
            A(f"v_dot2c_f32_bf16 v{s1}, s{S_ONES}, v{sx+k}")
            A(f"v_dot2c_f32_bf16 v{s2_}, v{sx+k}, v{sx+k}")

    for r in (s1, s2_):
        A(f"v_add_f32_dpp v{r}, v{r}, v{r} quad_perm:[1,0,3,2] row_mask:0xf bank_mask:0xf")
    for r in (s1, s2_):
        A(f"v_add_f32_dpp v{r}, v{r}, v{r} quad_perm:[2,3,0,1] row_mask:0xf bank_mask:0xf")
    A(f"v_mul_f32 v{s1}, {hx(1/512)}, v{s1}")
    A(f"v_mul_f32 v{t0}, v{s1}, v{s1}")
    A(f"v_mul_f32 v{s2_}, {hx(1/512)}, v{s2_}")
    A(f"v_sub_f32 v{s2_}, v{s2_}, v{t0}")
    A(f"v_max_f32 v{s2_}, 0, v{s2_}")
    A(f"v_add_f32 v{s2_}, {hx(1e-5)}, v{s2_}")
    A(f"v_rsq_f32 v{s2_}, v{s2_}")
    mm = V.get(2)
    split_hilo(A, mm, mm + 1, s1, t0, neg=True)
    A(f"v_lshlrev_b32 v{t0}, 2, v{vrow}")
    A(f"v_add_u32 v{t0}, {LS}, v{t0}")
    A(f"ds_write_b32 v{t0}, v{s2_}")
    A(f"v_lshlrev_b32 v{t1}, 3, v{vrow}")
    A(f"v_add_u32 v{t1}, {LS+256}, v{t1}")
    A(f"ds_write_b64 v{t1}, {v(mm,2)}")
    augw = V.get(4)
    pack_hl(A, augw, cs, t2)
    A(f"v_mov_b32 v{augw+1}, v{augw}")
    A(f"v_mov_b32 v{augw+2}, 0")
    A(f"v_mov_b32 v{augw+3}, 0")
    A.barrier()
    augx0, augx1 = V.get(4), V.get(4)
    A(f"s_and_b32 s{sT}, s{sW}, 1")
    A(f"s_lshl_b32 s{sT}, s{sT}, 5")
    A(f"v_and_b32 v{t0}, 31, v0")
    A(f"v_add_u32 v{t0}, s{sT}, v{t0}")
    A(f"v_lshlrev_b32 v{t1}, 3, v{t0}")
    A(f"v_add_u32 v{t1}, {LS+256}, v{t1}")
    A(f"ds_read_b64 {v(augx0,2)}, v{t1}")
    A(f"v_xor_b32 v{t1}, 256, v{t0}")
    A(f"v_xor_b32 v{t1}, 32, v{t0}")
    A(f"v_lshlrev_b32 v{t1}, 3, v{t1}")
    A(f"v_add_u32 v{t1}, {LS+256}, v{t1}")
    A(f"ds_read_b64 {v(augx1,2)}, v{t1}")
    rq = V.get(2)
    A(f"v_lshlrev_b32 v{t1}, 2, v{t0}")
    A(f"v_add_u32 v{t1}, {LS}, v{t1}")
    A(f"ds_read_b32 v{rq}, v{t1}")
    rr = wf
    A(f"v_lshrrev_b32 v{t1}, 5, v0")
    A(f"v_lshlrev_b32 v{t1}, 2, v{t1}")
    A(f"v_add_u32 v{t1}, s{sT}, v{t1}")
    A(f"v_xor_b32 v{t2}, 32, v{t1}")
    A(f"v_lshlrev_b32 v{t1}, 2, v{t1}")
    A(f"v_lshlrev_b32 v{t2}, 2, v{t2}")
    A(f"v_add_u32 v{t1}, {LS}, v{t1}")
    A(f"v_add_u32 v{t2}, {LS}, v{t2}")
    for g in range(4):
        A(f"ds_read_b128 {v(rr+4*g,4)}, v{t1} offset:{g*32}")
    for g in range(4):
        A(f"ds_read_b128 {v(rr+16+4*g,4)}, v{t2} offset:{g*32}")
    for r in (augx0, augx1):
        A(f"v_mov_b32 v{r+2}, 0")
        A(f"v_mov_b32 v{r+3}, 0")
    A(f"{MF} {v(acc0,16)}, {v(augx0,4)}, {v(augw,4)}, {v(acc0,16)}")
    A(f"{MF} {v(acc1,16)}, {v(augx1,4)}, {v(augw,4)}, {v(acc1,16)}")
    c1, c2, c3, cl, cm = V.get(2), V.get(2), V.get(2), V.get(2), V.get(2)
    A(f"v_and_b32 v{t0}, 16, v0")
    A(f"v_cmp_eq_u32 vcc, 0, v{t0}")
    A(f"v_mov_b32 v{t1}, {hx(1e-6)}")
    A(f"v_mov_b32 v{t2}, 0xff800000")
    A(f"v_cndmask_b32 v{c1}, v{t2}, v{t1}, vcc")
    A(f"v_cndmask_b32 v{c3}, 0, v{t1}, vcc")
    A(f"v_mov_b32 v{t2}, 1.0")
    A(f"v_cndmask_b32 v{c2}, 0, v{t2}, vcc")
    A(f"v_mov_b32 v{cl}, {hx(LOG2E)}")
    A(f"v_mov_b32 v{cm}, {hx(-1e-6*LOG2E)}")
    fr = xo
    fb = sx
    u = V.get(4)
    for ti, acc in enumerate((acc0, acc1)):
        for p in range(8):
            a = acc + 2 * p
            uu = u + 2 * (p % 2)
            A(f"v_pk_fma_f32 {v(a,2)}, {v(a,2)}, {v(rr+16*ti+2*p,2)}, {v(c3,2)} op_sel_hi:[1,1,0]")
            A(f"v_pk_fma_f32 {v(uu,2)}, {v(a,2)}, {v(cl,2)}, {v(cm,2)} op_sel_hi:[1,0,0]")
            A(f"v_max_f32 v{a}, v{a}, v{c1}")
            A(f"v_exp_f32 v{uu}, v{uu} clamp")
            A(f"v_exp_f32 v{uu+1}, v{uu+1} clamp")
            A(f"v_max_f32 v{a+1}, v{a+1}, v{c1}")
            A(f"v_pk_fma_f32 {v(a,2)}, {v(uu,2)}, {v(c2,2)}, {v(a,2)} op_sel_hi:[1,0,1]")
            A(f"v_cvt_pk_bf16_f32 v{fr+8*ti+p}, v{a}, v{a+1}")
    A(f"v_mov_b32 v{t1}, s{S_ONES}")
    for k in range(16):
        A(f"v_cndmask_b32 v{fb+k}, v{fr+k}, v{t1}, vcc")
    for f in range(4):
        A(f"{MF} {v(acc0,16)}, {v(fr+4*f,4)}, {v(fb+4*f,4)}, {'0' if f == 0 else v(acc0,16)}")
    LT = LS + 1024
    ka0, ka1 = V.get(), V.get()
    kv_lane_offsets(A, ka0, ka1, t0, t1)
    A(f"s_mul_i32 s{sT}, s{sW}, {KVH}")
    A(f"s_add_u32 s{sT}, s{sT}, {LT}")
    A(f"v_add_u32 v{ka0}, s{sT}, v{ka0}")
    A(f"v_add_u32 v{ka1}, s{sT}, v{ka1}")
    A(f"v_lshlrev_b32 v{t2}, 2, v0")
    A(f"v_add_u32 v{t0}, s{sT}, v{t2}")
    A(f"ds_write_b128 v{ka0}, {v(acc0,4)}")
    A(f"ds_write_b128 v{ka1}, {v(acc0+4,4)}")
    for k in range(5):
        A(f"ds_read_b32 v{acc1+k}, v{t0} offset:{k*256}")
    A(f"s_lshl_b32 s{sT}, s{S_C}, 2")
    A(f"s_add_u32 s{sT}, s{sT}, s{sW}")
    A(f"s_mul_i32 s{sT}, s{sT}, {KVH}")
    A(f"s_add_u32 s{sT}, s{sT}, {WS_KV}")
    for k in range(4):
        A(f"buffer_atomic_add_f32 v{acc1+k}, v{t2}, {s(S_WS,4)}, s{sT} offen offset:{k*256}")
    A("s_mov_b64 exec, 0xffff")
    A(f"buffer_atomic_add_f32 v{acc1+4}, v{t2}, {s(S_WS,4)}, s{sT} offen offset:1024")
    A("s_mov_b64 exec, -1")

    stamp(A, 2)
    A(f"v_mov_b32 v{cs}, 0")

    def qreads(q, ks):
        base, off = (wq, QSLOT[q]) if QSLOT[q] < 65536 - 16383 else (wq2, QSLOT[q] - 65536)
        A(f"ds_read_b64_tr_b16 {v(wf+ks*4,2)}, v{base} offset:{off + ks*2048}")
        A(f"ds_read_b64_tr_b16 {v(wf+ks*4+2,2)}, v{base} offset:{off + ks*2048 + 512}")

    for q in range(4):
        if q in (0, 3):
            A.wait_tag("q2" if q == 0 else "q3")
            A.barrier()
        for ks in range(4):
            qreads(q, ks)
        for ks in range(8):
            first = q == 0 and ks == 0
            A(f"{MF} {v(acc1,16)}, {v(wf+ks*4,4)}, {a_(xown+(q*8+ks)*4,4)}, {'0' if first else v(acc1,16)}")
            if ks + 4 < 8:
                qreads(q, ks + 4)
        for k in range(32):
            A(f"v_dot2c_f32_bf16 v{cs}, s{S_ONES}, v{wf+k}")
    pack_hl(A, augw, cs, t2)
    A(f"v_mov_b32 v{augw+1}, v{augw}")
    A(f"{MF} {v(acc1,16)}, {v(augw,4)}, {v(augx0,4)}, {v(acc1,16)}")
    A(f"v_mov_b32 v{c3}, {hx(1e-6)}")
    for p in range(8):
        a = acc1 + 2 * p
        uu = u + 2 * (p % 2)
        A(f"v_pk_fma_f32 {v(a,2)}, {v(a,2)}, {v(rq,2)}, {v(c3,2)} op_sel_hi:[1,0,0]")
        A(f"v_pk_fma_f32 {v(uu,2)}, {v(a,2)}, {v(cl,2)}, {v(cm,2)} op_sel_hi:[1,0,0]")
        A(f"v_max_f32 v{a}, v{a}, v{c3}")
        A(f"v_exp_f32 v{uu}, v{uu} clamp")
        A(f"v_exp_f32 v{uu+1}, v{uu+1} clamp")
        A(f"v_max_f32 v{a+1}, v{a+1}, v{c3}")
        A(f"v_pk_add_f32 {v(a,2)}, {v(uu,2)}, {v(a,2)}")
        A(f"v_cvt_pk_bf16_f32 v{fr+p}, v{a}, v{a+1}")
    A(f"s_lshl_b32 s{sT}, s{S_RB}, 1")
    A(f"s_and_b32 s{sL}, s{sW}, 1")
    A(f"s_add_u32 s{sT}, s{sT}, s{sL}")
    A(f"s_lshl_b32 s{sT}, s{sT}, 5")
    A(f"s_lshl_b32 s{sL}, s{S_C}, 2")
    A(f"s_add_u32 s{sT}, s{sT}, s{sL}")
    A(f"s_and_b32 s{sL}, s{sW}, 2")
    A(f"s_add_u32 s{sT}, s{sT}, s{sL}")
    A(f"s_lshl_b32 s{sT}, s{sT}, 10")
    A(f"v_lshlrev_b32 v{t2}, 4, v0")
    A(f"buffer_store_dwordx4 {v(fr,4)}, v{t2}, {s(S_WS,4)}, s{sT} offen")
    A(f"buffer_store_dwordx4 {v(fr+4,4)}, v{t2}, {s(S_WS,4)}, s{sT} offen offset:1024")


def kv_lane_offsets(A, k0, k1, t0, t1):
    A(f"v_lshrrev_b32 v{t0}, 5, v0")
    A(f"v_and_b32 v{t1}, 15, v0")
    A(f"v_lshlrev_b32 v{t1}, 4, v{t1}")
    A(f"v_lshl_add_u32 v{t1}, v{t0}, 8, v{t1}")
    A(f"v_lshlrev_b32 v{t0}, 4, v{t0}")
    A(f"v_add_u32 v{t0}, 1024, v{t0}")
    A(f"v_cndmask_b32 v{k0}, v{t1}, v{t0}, vcc")
    A(f"v_add_u32 v{t1}, 512, v{t1}")
    A(f"v_add_u32 v{t0}, 32, v{t0}")
    A(f"v_cndmask_b32 v{k1}, v{t1}, v{t0}, vcc")


def tr_base_128(A, dst, t0, t1, t2, s_half):
    A(f"v_bfe_u32 v{t0}, v0, 2, 2")
    A(f"v_lshrrev_b32 v{t1}, 5, v0")
    A(f"v_lshl_add_u32 v{t1}, v{t1}, 2, v{t0}")
    A(f"v_lshlrev_b32 v{t1}, 7, v{t1}")
    A(f"v_and_b32 v{t2}, 3, v0")
    A(f"v_lshl_add_u32 v{t1}, v{t2}, 3, v{t1}")
    A(f"v_bfe_u32 v{t2}, v0, 4, 1")
    A(f"v_lshl_add_u32 v{t1}, v{t2}, 5, v{t1}")
    A(f"v_lshrrev_b32 v{t0}, 1, v{t0}")
    A(f"v_xor_b32 v{t0}, s{s_half}, v{t0}")
    A(f"v_lshl_add_u32 v{dst}, v{t0}, 6, v{t1}")


def dma_off_128(A, dst, t0, t1, rowstride):
    A(f"v_lshrrev_b32 v{t0}, 3, v0")
    A(f"v_mul_u32_u24 v{dst}, {rowstride}, v{t0}")
    A(f"v_and_b32 v{t0}, 2, v{t0}")
    A(f"v_lshlrev_b32 v{t0}, 1, v{t0}")
    A(f"v_and_b32 v{t1}, 7, v0")
    A(f"v_xor_b32 v{t0}, v{t0}, v{t1}")
    A(f"v_lshl_add_u32 v{dst}, v{t0}, 4, v{dst}")


def phase_B(A, V, G):
    sW = S_WAVE
    sT, sU, sL, sTT, sN = S_T0, S_T0 + 1, S_T0 + 2, S_T0 + 3, S_T0 + 4
    t0, t1, t2 = V.get(), V.get(), V.get()
    LRED = 65536
    ka0, ka1, l16 = V.get(), V.get(), V.get()
    A(f"v_and_b32 v{t0}, 16, v0")
    A(f"v_cmp_eq_u32 vcc, 0, v{t0}")
    kv_lane_offsets(A, ka0, ka1, t0, t1)
    A(f"v_lshlrev_b32 v{l16}, 4, v0")
    kvr = V.get(64)
    pq = G.get(64)
    vW = V.get()
    dma_off_128(A, vW, t0, t1, 1024)
    A(f"s_mul_i32 s{sU}, s{sW}, {8*KVH}")
    A(f"s_add_u32 s{sU}, s{sU}, {WS_KV}")
    A(f"s_and_b32 s{sTT}, s{sW}, 1")
    A(f"s_lshr_b32 s{sN}, s{sW}, 1")
    sP0, sP1, sWo = S_T0 + 5, S_T0 + 6, S_T0 + 7
    A(f"s_lshl_b32 s{sP0}, s{S_RB}, 1")
    A(f"s_add_u32 s{sP0}, s{sP0}, s{sTT}")
    A(f"s_mov_b32 s{sTT}, s{sP0}")
    A(f"s_lshl_b32 s{sP0}, s{sP0}, 15")
    A(f"s_lshl_b32 s{sT}, s{sW}, 13")
    A(f"s_add_u32 s{sP0}, s{sP0}, s{sT}")
    A(f"s_xor_b32 s{sP1}, s{sP0}, 0x8000")
    A(f"s_lshl_b32 s{sWo}, s{sW}, 17")
    A(f"s_lshl_b32 s{sT}, s{S_C}, 7")
    A(f"s_add_u32 s{sWo}, s{sWo}, s{sT}")
    A(f"s_lshl_b32 s{sL}, s{sW}, 14")
    acc = V.get(64)
    xr = V.get(8)
    A(f"v_and_b32 v{t0}, 31, v0")
    A(f"v_lshrrev_b32 v{t1}, 5, v0")
    A(f"v_lshlrev_b32 v{t1}, 3, v{t1}")
    A(f"v_lshl_add_u32 v{t2}, v{t0}, 10, v{t1}")
    sX = S_T0 + 8
    A(f"s_lshl_b32 s{sX}, s{sTT}, 15")
    A(f"s_lshl_b32 s{sT}, s{S_C}, 7")
    A(f"s_add_u32 s{sX}, s{sX}, s{sT}")
    A(f"s_lshl_b32 s{sT}, s{sN}, 6")
    A(f"s_add_u32 s{sX}, s{sX}, s{sT}")
    for h in range(8):
        o = h * KVH
        A(f"s_add_u32 s{sT}, s{sU}, {o}")
        A(f"buffer_load_dwordx4 {v(kvr+8*h,4)}, v{ka0}, {s(S_WS,4)}, s{sT} offen")
        A(f"buffer_load_dwordx4 {v(kvr+8*h+4,4)}, v{ka1}, {s(S_WS,4)}, s{sT} offen")
        if h == 4:
            A(f"s_add_u32 s{sP0}, s{sP0}, 4096")
            A(f"s_add_u32 s{sP1}, s{sP1}, 4096")
        A(f"buffer_load_dwordx4 {a_(pq+8*h,4)}, v{l16}, {s(S_WS,4)}, s{sP0} offen offset:{(h%4)*1024}")
        A(f"buffer_load_dwordx4 {a_(pq+8*h+4,4)}, v{l16}, {s(S_WS,4)}, s{sP1} offen offset:{(h%4)*1024}")
        for j in range(2):
            A(f"s_add_u32 m0, s{sL}, {h*2048 + j*1024}")
            A(f"s_add_u32 s{sT}, s{sWo}, {(h*16 + j*8)*1024}")
            A(f"buffer_load_dwordx4 v{vW}, {s(S_WO,4)}, s{sT} offen lds", tag=f"w{h}")
        if h == 0:
            for g in range(4):
                A(f"buffer_load_dwordx2 {v(xr+2*g,2)}, v{t2}, {s(S_X,4)}, s{sX} offen offset:{g*16}")
    wb0, wb1 = V.get(), V.get()
    tr_base_128(A, wb0, t0, t1, t2, sN)
    A(f"v_add_u32 v{wb0}, s{sL}, v{wb0}")
    A(f"v_xor_b32 v{wb1}, 64, v{wb0}")
    d = V.get(64)
    of = V.get(8)
    wf = V.get(16)
    rc = V.get(2)

    def kvcvt(h):
        for k in range(4):
            A(f"v_cvt_pk_bf16_f32 v{kvr+8*h+k}, v{kvr+8*h+2*k}, v{kvr+8*h+2*k+1}")

    def omf(h, t):
        A(f"{MF} {v(d+32*(h%2)+16*t,16)}, {v(kvr+8*h,4)}, {a_(pq+8*h+4*t,4)}, 0")

    def wread(h):
        A.wait_tag(f"w{h}")
        for n, b in enumerate((wb0, wb1)):
            for jj in range(2):
                A(f"ds_read_b64_tr_b16 {v(wf+8*(h%2)+4*n+2*jj,2)}, v{b} offset:{h*2048 + jj*1024}")

    def ovalu(h, t):
        dd = d + 32 * (h % 2) + 16 * t
        A(f"v_add_f32 v{rc+t}, {hx(1e-6)}, v{dd}")
        A(f"v_rcp_f32 v{rc+t}, v{rc+t}")
        for k in range(8):
            A(f"v_mul_f32 v{dd+8+k}, v{rc+t}, v{dd+8+k}")
        for k in range(4):
            A(f"v_cvt_pk_bf16_f32 v{of+4*t+k}, v{dd+8+2*k}, v{dd+9+2*k}")

    kvcvt(0)
    omf(0, 0)
    omf(0, 1)
    wread(0)
    stamp(A, 1)
    for g in range(4):
        for k in range(2):
            A(f"v_lshlrev_b32 v{acc+4*g+2*k}, 16, v{xr+2*g+k}")
            A(f"v_and_b32 v{acc+4*g+2*k+1}, 0xffff0000, v{xr+2*g+k}")
    for h in range(8):
        if h + 1 < 8:
            kvcvt(h + 1)
            omf(h + 1, 0)
        ovalu(h, 0)
        if h + 1 < 8:
            omf(h + 1, 1)
            wread(h + 1)
        for n in range(2):
            j = 2 * n
            A(f"{MF} {v(acc+16*j,16)}, {v(wf+8*(h%2)+4*n,4)}, {v(of,4)}, {'0' if (h == 0 and j) else v(acc+16*j,16)}")
        ovalu(h, 1)
        for n in range(2):
            j = 2 * n + 1
            A(f"{MF} {v(acc+16*j,16)}, {v(wf+8*(h%2)+4*n,4)}, {v(of+4,4)}, {'0' if h == 0 else v(acc+16*j,16)}")
    stamp(A, 2)
    for j in range(1, 4):
        A(f"s_xor_b32 s{sT}, s{sW}, {j}")
        A(f"s_mul_i32 s{sT}, s{sT}, 12288")
        A(f"s_add_u32 s{sT}, s{sT}, {LRED + (j-1)*4096}")
        A(f"v_add_u32 v{t0}, s{sT}, v{l16}")
        for q in range(4):
            A(f"ds_write_b128 v{t0}, {v(acc+16*j+4*q,4)} offset:{q*1024}")
    A.barrier()
    A(f"s_mul_i32 s{sT}, s{sW}, 12288")
    A(f"s_add_u32 s{sT}, s{sT}, {LRED}")
    A(f"v_add_u32 v{t0}, s{sT}, v{l16}")
    for j in range(1, 4):
        for q in range(4):
            A(f"ds_read_b128 {v(acc+16*j+4*q,4)}, v{t0} offset:{(j-1)*4096 + q*1024}")
    for j in range(1, 4):
        for p in range(8):
            A(f"v_pk_add_f32 {v(acc+2*p,2)}, {v(acc+2*p,2)}, {v(acc+16*j+2*p,2)}")
    for p in range(8):
        A(f"v_cvt_pk_bf16_f32 v{of+p}, v{acc+2*p}, v{acc+2*p+1}")
    A(f"s_lshl_b32 s{sT}, s{S_C}, 1")
    A(f"s_add_u32 s{sT}, s{sT}, s{sN}")
    A(f"s_lshl_b32 s{sU}, s{sTT}, 4")
    A(f"s_add_u32 s{sU}, s{sU}, s{sT}")
    A(f"s_lshl_b32 s{sT}, s{sU}, 11")
    A(f"s_add_u32 s{sT}, s{sT}, {WS_H}")
    A(f"buffer_store_dwordx4 {v(of,4)}, v{l16}, {s(S_WS,4)}, s{sT} offen")
    A(f"buffer_store_dwordx4 {v(of+4,4)}, v{l16}, {s(S_WS,4)}, s{sT} offen offset:1024")
    st = V.get(4)
    A(f"v_mov_b32 v{st}, 0")
    A(f"v_mov_b32 v{st+1}, 0")
    for p in range(8):
        A(f"v_dot2c_f32_bf16 v{st}, s{S_ONES}, v{of+p}")
        A(f"v_dot2c_f32_bf16 v{st+1}, v{of+p}, v{of+p}")
    A(f"v_mov_b32 v{st+2}, v{st}")
    A(f"v_mov_b32 v{st+3}, v{st+1}")
    A(f"v_permlane32_swap_b32 v{st}, v{st+2}")
    A(f"v_permlane32_swap_b32 v{st+1}, v{st+3}")
    A(f"v_add_f32 v{st}, v{st}, v{st+2}")
    A(f"v_add_f32 v{st+1}, v{st+1}, v{st+3}")
    A(f"s_lshl_b32 s{sT}, s{sU}, 8")
    A(f"s_add_u32 s{sT}, s{sT}, {WS_HST}")
    A(f"v_and_b32 v{t0}, 31, v0")
    A(f"v_lshlrev_b32 v{t0}, 3, v{t0}")
    A(f"buffer_store_dwordx2 {v(st,2)}, v{t0}, {s(S_WS,4)}, s{sT} offen")


def phase_C(A, V, G, name):
    sW = S_WAVE
    sT, sU, sL, sTT, sT0 = S_T0, S_T0 + 1, S_T0 + 2, S_T0 + 3, S_T0 + 4
    t0, t1, t2 = V.get(), V.get(), V.get()
    LCS = 98304
    A(f"s_lshr_b32 s{sU}, s2, 3")
    A(f"s_and_b32 s{sU}, s{sU}, 15")
    A(f"s_cmp_eq_u32 s{sU}, 15")
    A(f"s_cbranch_scc1 L_end_{name}")
    A(f"s_mul_i32 s{sT0}, s{sU}, 3")
    A(f"s_min_u32 s{sT0}, s{sT0}, 40")
    A(f"s_and_b32 s{sTT}, s2, 7")
    A(f"s_lshl_b32 s{sTT}, s{sTT}, 1")
    A(f"s_lshr_b32 s{sT}, s2, 7")
    A(f"s_add_u32 s{sTT}, s{sTT}, s{sT}")
    A(f"s_lshl_b32 s{sTT}, s{sTT}, 2")
    A(f"s_add_u32 s{sTT}, s{sTT}, s{sW}")
    vW = V.get(3, 1)
    for i in range(3):
        A(f"v_add_u32 v{t0}, {64*i}, v0")
        A(f"v_mul_u32_u24 v{t1}, 5462, v{t0}")
        A(f"v_lshrrev_b32 v{t1}, 16, v{t1}")
        A(f"v_mul_u32_u24 v{t2}, 12, v{t1}")
        A(f"v_sub_u32 v{t0}, v{t0}, v{t2}")
        A(f"v_mul_u32_u24 v{t1}, 2752, v{t1}")
        A(f"v_lshl_add_u32 v{vW+i}, v{t0}, 4, v{t1}")
    l16 = V.get()
    A(f"v_lshlrev_b32 v{l16}, 4, v0")
    sWo, sH = S_T0 + 5, S_T0 + 6
    A(f"s_mul_i32 s{sWo}, s{sW}, {16*2752}")
    A(f"s_lshl_b32 s{sT}, s{sT0}, 6")
    A(f"s_add_u32 s{sWo}, s{sWo}, s{sT}")
    A(f"s_mul_i32 s{sL}, s{sW}, 3072")
    A(f"s_lshl_b32 s{sH}, s{sTT}, 15")
    A(f"s_add_u32 s{sH}, s{sH}, {WS_H}")
    hf = G.get(128)
    stt = V.get(16)
    b1 = V.get(3, 1)
    for grp in range(8):
        for i in range(3):
            A(f"s_add_u32 m0, s{sL}, {grp*12288 + i*1024}")
            A(f"s_add_u32 s{sT}, s{sWo}, {grp*64*2752}")
            A(f"buffer_load_dwordx4 v{vW+i}, {s(S_W1,4)}, s{sT} offen lds", tag=f"w{grp}")
        for k in range(4):
            A(f"buffer_load_dwordx4 {a_(hf+16*grp+4*k,4)}, v{l16}, {s(S_WS,4)}, s{sH} offen offset:{k*1024}")
        A(f"s_add_u32 s{sH}, s{sH}, 4096")
    wb, wb2 = V.get(), V.get()
    A(f"v_bfe_u32 v{t0}, v0, 2, 2")
    A(f"v_lshrrev_b32 v{t1}, 5, v0")
    A(f"v_lshl_add_u32 v{t1}, v{t1}, 2, v{t0}")
    A(f"v_mul_u32_u24 v{t1}, 192, v{t1}")
    A(f"v_and_b32 v{t2}, 3, v0")
    A(f"v_lshl_add_u32 v{t1}, v{t2}, 3, v{t1}")
    A(f"v_bfe_u32 v{t2}, v0, 4, 1")
    A(f"v_lshl_add_u32 v{wb}, v{t2}, 5, v{t1}")
    A(f"v_add_u32 v{wb2}, 49152, v{wb}")
    wo_, wo2 = V.get(), V.get()
    A(f"v_add_u32 v{wo_}, s{sL}, v{wb}")
    A(f"v_add_u32 v{wo2}, 49152, v{wo_}")
    acc = V.get(48)
    wf = V.get(36)
    cf = V.get(12)
    cs = V.get(4)
    for k in range(3):
        A(f"v_mov_b32 v{cs+k}, 0")

    def wread(ks):
        b, off = (wb, ks * 3072) if ks < 16 else (wb2, (ks - 16) * 3072)
        for n in range(3):
            for jj in range(2):
                A(f"ds_read_b64_tr_b16 {v(wf+12*(ks%3)+4*n+2*jj,2)}, v{b} offset:{off + jj*1536 + n*64}")

    for grp in range(8):
        A.wait_tag(f"w{grp}")
        A.barrier()
        if grp == 0:
            stamp(A, 1)
        if grp == 1:
            A(f"v_and_b32 v{t0}, 31, v0")
            A(f"v_lshrrev_b32 v{t1}, 5, v0")
            A(f"v_lshlrev_b32 v{t2}, 1, v{t0}")
            A(f"v_lshlrev_b32 v{t0}, 3, v{t0}")
            A(f"v_lshl_add_u32 v{t0}, v{t1}, 11, v{t0}")
            A(f"s_lshl_b32 s{sT}, s{sTT}, 12")
            A(f"s_add_u32 s{sT}, s{sT}, {WS_HST}")
            for k in range(8):
                A(f"buffer_load_dwordx2 {v(stt+2*k,2)}, v{t0}, {s(S_WS,4)}, s{sT} offen offset:{k*256}")
            A(f"s_lshl_b32 s{sT}, s{sT0}, 6")
            for n in range(3):
                A(f"buffer_load_ushort v{b1+n}, v{t2}, {s(S_B1,4)}, s{sT} offen offset:{n*64}")
        wread(4 * grp)
        wread(4 * grp + 1)
        for k in range(4):
            ks = 4 * grp + k
            for n in range(3):
                A(f"{MF} {v(acc+16*n,16)}, {v(wf+12*(ks%3)+4*n,4)}, {a_(hf+4*ks,4)}, {'0' if ks == 0 else v(acc+16*n,16)}")
                if n == 0 and k + 2 < 4:
                    wread(ks + 2)
                if n == 0 and k == 2:
                    b, off = (wo_, grp * 12288) if grp < 4 else (wo2, (grp - 4) * 12288)
                    for nn in range(3):
                        for jj in range(2):
                            A(f"ds_read_b64_tr_b16 {v(cf+4*nn+2*jj,2)}, v{b} offset:{off + jj*1536 + nn*64}")
        for k in range(12):
            A(f"v_dot2c_f32_bf16 v{cs+k//4}, s{S_ONES}, v{cf+k}")
    stamp(A, 2)
    A(f"s_lshl_b32 s{sT}, s{sW}, 10")
    A(f"s_add_u32 s{sT}, s{sT}, {LCS}")
    A(f"v_add_u32 v{t0}, s{sT}, v{l16}")
    A(f"ds_write_b128 v{t0}, {v(cs,4)}")
    for k in range(1, 8):
        A(f"v_pk_add_f32 {v(stt,2)}, {v(stt,2)}, {v(stt+2*k,2)}")
    A(f"v_mov_b32 v{stt+2}, v{stt}")
    A(f"v_mov_b32 v{stt+3}, v{stt+1}")
    A(f"v_permlane32_swap_b32 v{stt}, v{stt+2}")
    A(f"v_permlane32_swap_b32 v{stt+1}, v{stt+3}")
    A(f"v_add_f32 v{stt}, v{stt}, v{stt+2}")
    A(f"v_add_f32 v{stt+1}, v{stt+1}, v{stt+3}")
    A.barrier()
    A(f"v_add_u32 v{t0}, {LCS}, v{l16}")
    for k in range(4):
        A(f"ds_read_b128 {v(wf+4*k,4)}, v{t0} offset:{k*1024}")
    mean, var, rs, sd = stt, stt + 1, stt + 4, stt + 6
    A(f"v_mul_f32 v{mean}, {hx(1/512)}, v{mean}")
    A(f"v_mul_f32 v{t1}, v{mean}, v{mean}")
    A(f"v_mul_f32 v{var}, {hx(1/512)}, v{var}")
    A(f"v_sub_f32 v{var}, v{var}, v{t1}")
    A(f"v_max_f32 v{var}, 0, v{var}")
    A(f"v_add_f32 v{var}, {hx(1e-5)}, v{var}")
    A(f"v_rsq_f32 v{rs}, v{var}")
    A(f"v_mul_f32 v{sd}, v{var}, v{rs}")
    augx = V.get(4)
    split_hilo(A, augx, augx + 1, mean, t1, neg=True)
    pack_hl(A, augx + 2, sd, t1)
    A(f"v_lshrrev_b32 v{t1}, 16, v{augx+2}")
    A(f"v_and_b32 v{augx+2}, 0xffff, v{augx+2}")
    A(f"v_cmp_lt_u32 vcc, 31, v0")
    A(f"v_cndmask_b32 v{augx+2}, v{augx+2}, v{t1}, vcc")
    A(f"v_mov_b32 v{augx+3}, 0")
    for k in range(1, 4):
        for n in range(3):
            A(f"v_add_f32 v{wf+n}, v{wf+n}, v{wf+4*k+n}")
    aw = cf
    for n in range(3):
        pack_hl(A, aw + 4 * n, wf + n, t1)
        A(f"v_mov_b32 v{aw+4*n+1}, v{aw+4*n}")
        A(f"v_mov_b32 v{aw+4*n+2}, v{b1+n}")
        A(f"v_mov_b32 v{aw+4*n+3}, 0")
    for n in range(3):
        A(f"{MF} {v(acc+16*n,16)}, {v(aw+4*n,4)}, {v(augx,4)}, {v(acc+16*n,16)}")
    c1 = -2.0 * 0.7978845608028654 * LOG2E
    c2 = c1 * 0.044715
    k1, k2 = stt + 8, stt + 10
    A(f"v_mul_f32 v{k1}, {hx(c1)}, v{rs}")
    A(f"v_mul_f32 v{k2}, v{rs}, v{rs}")
    A(f"v_mul_f32 v{k2}, v{k2}, v{rs}")
    A(f"v_mul_f32 v{k2}, {hx(c2)}, v{k2}")
    A(f"s_mul_i32 s{sU}, s{sTT}, 86")
    A(f"s_lshl_b32 s{sT}, s{sT0}, 1")
    A(f"s_add_u32 s{sU}, s{sU}, s{sT}")
    A(f"s_lshl_b32 s{sU}, s{sU}, 10")
    A(f"s_add_u32 s{sU}, s{sU}, {WS_HID}")
    u = wf + 16
    o = wf
    for n in range(3):
        ob = o + 8 * (n % 2)
        for p in range(8):
            a = acc + 16 * n + 2 * p
            uu = u + 2 * (p % 2)
            A(f"v_pk_mul_f32 {v(uu,2)}, {v(a,2)}, {v(a,2)}")
            A(f"v_pk_fma_f32 {v(uu,2)}, {v(uu,2)}, {v(k2,2)}, {v(k1,2)} op_sel_hi:[1,0,0]")
            A(f"v_pk_mul_f32 {v(uu,2)}, {v(uu,2)}, {v(a,2)}")
            A(f"v_exp_f32 v{uu}, v{uu}")
            A(f"v_exp_f32 v{uu+1}, v{uu+1}")
            A(f"v_pk_fma_f32 {v(uu,2)}, {v(uu,2)}, {v(sd,2)}, {v(sd,2)} op_sel_hi:[1,0,0]")
            A(f"v_rcp_f32 v{uu}, v{uu}")
            A(f"v_rcp_f32 v{uu+1}, v{uu+1}")
            A(f"v_pk_mul_f32 {v(a,2)}, {v(a,2)}, {v(uu,2)}")
            A(f"v_cvt_pk_bf16_f32 v{ob+p}, v{a}, v{a+1}")
        if n == 2:
            A(f"s_add_u32 s{sU}, s{sU}, 4096")
        A(f"buffer_store_dwordx4 {v(ob,4)}, v{l16}, {s(S_WS,4)}, s{sU} offen offset:{(n%2)*2048}")
        A(f"buffer_store_dwordx4 {v(ob+4,4)}, v{l16}, {s(S_WS,4)}, s{sU} offen offset:{(n%2)*2048+1024}")


def phase_D(A, V, G, name):
    sW = S_WAVE
    sT, sU, sL, sTT, sN = S_T0, S_T0 + 1, S_T0 + 2, S_T0 + 3, S_T0 + 4
    sH0, sH1, sWo = S_T0 + 5, S_T0 + 6, S_T0 + 7
    t0, t1, t2 = V.get(), V.get(), V.get()
    NS, RING, LA = 22, 16, 13
    l16, vW = V.get(), V.get()
    A(f"v_lshlrev_b32 v{l16}, 4, v0")
    dma_off_128(A, vW, t0, t1, 1024)
    A(f"s_and_b32 s{sTT}, s{sW}, 1")
    A(f"s_lshr_b32 s{sN}, s{sW}, 1")
    A(f"s_lshl_b32 s{sT}, s{S_RB}, 1")
    A(f"s_add_u32 s{sTT}, s{sTT}, s{sT}")
    A(f"s_mul_i32 s{sU}, s{sW}, {NS*1024}")
    A(f"s_add_u32 s{sU}, s{sU}, {WS_HID}")
    A(f"s_mul_i32 s{sH0}, s{sTT}, {86*1024}")
    A(f"s_add_u32 s{sH0}, s{sH0}, s{sU}")
    A(f"s_xor_b32 s{sT}, s{sTT}, 1")
    A(f"s_mul_i32 s{sH1}, s{sT}, {86*1024}")
    A(f"s_add_u32 s{sH1}, s{sH1}, s{sU}")
    A(f"s_mul_i32 s{sWo}, s{sW}, {NS*16*1024}")
    A(f"s_lshl_b32 s{sT}, s{S_C}, 7")
    A(f"s_add_u32 s{sWo}, s{sWo}, s{sT}")
    A(f"s_lshl_b32 s{sL}, s{sW}, 15")
    acc = V.get(64)
    hr = V.get(8)
    b2 = V.get(8)
    A(f"s_lshl_b32 s{sT}, s{S_C}, 1")
    A(f"s_add_u32 s{sT}, s{sT}, s{sN}")
    A(f"s_lshl_b32 s{sU}, s{sTT}, 4")
    A(f"s_add_u32 s{sU}, s{sU}, s{sT}")
    A(f"s_lshl_b32 s{sU}, s{sU}, 11")
    A(f"s_add_u32 s{sU}, s{sU}, {WS_H}")
    A(f"buffer_load_dwordx4 {v(hr,4)}, v{l16}, {s(S_WS,4)}, s{sU} offen")
    A(f"buffer_load_dwordx4 {v(hr+4,4)}, v{l16}, {s(S_WS,4)}, s{sU} offen offset:1024")
    A(f"s_lshl_b32 s{sT}, s{sT}, 6")
    A(f"v_lshrrev_b32 v{t2}, 5, v0")
    A(f"v_lshlrev_b32 v{t2}, 3, v{t2}")
    for g in range(4):
        A(f"buffer_load_dwordx2 {v(b2+2*g,2)}, v{t2}, {s(S_B2,4)}, s{sT} offen offset:{g*16}")
    hf = G.get(8 * RING)

    def issue(ks):
        for j in range(2):
            A(f"s_add_u32 m0, s{sL}, {(ks%RING)*2048 + j*1024}")
            A(f"s_add_u32 s{sT}, s{sWo}, {(ks*16 + j*8)*1024}")
            A(f"buffer_load_dwordx4 v{vW}, {s(S_W2,4)}, s{sT} offen lds", tag=f"w{ks}")
        r = hf + 8 * (ks % RING)
        A(f"buffer_load_dwordx4 {a_(r,4)}, v{l16}, {s(S_WS,4)}, s{sH0} offen offset:{(ks%4)*1024}")
        A(f"buffer_load_dwordx4 {a_(r+4,4)}, v{l16}, {s(S_WS,4)}, s{sH1} offen offset:{(ks%4)*1024}")
        if ks % 4 == 3:
            A(f"s_add_u32 s{sH0}, s{sH0}, 4096")
            A(f"s_add_u32 s{sH1}, s{sH1}, 4096")

    for ks in range(LA):
        issue(ks)
    wb0, wb1 = V.get(), V.get()
    tr_base_128(A, wb0, t0, t1, t2, sN)
    A(f"v_add_u32 v{wb0}, s{sL}, v{wb0}")
    A(f"v_xor_b32 v{wb1}, 64, v{wb0}")
    for p in range(8):
        A(f"v_lshlrev_b32 v{acc+2*p}, 16, v{hr+p}")
        A(f"v_and_b32 v{acc+2*p+1}, 0xffff0000, v{hr+p}")
        A(f"v_lshlrev_b32 v{t0}, 16, v{b2+p}")
        A(f"v_and_b32 v{t1}, 0xffff0000, v{b2+p}")
        A(f"v_add_f32 v{acc+2*p}, v{acc+2*p}, v{t0}")
        A(f"v_add_f32 v{acc+2*p+1}, v{acc+2*p+1}, v{t1}")
    wf = V.get(16)

    def wread(ks):
        A.wait_tag(f"w{ks}")
        for n, b in enumerate((wb0, wb1)):
            for jj in range(2):
                A(f"ds_read_b64_tr_b16 {v(wf+8*(ks%2)+4*n+2*jj,2)}, v{b} offset:{(ks%RING)*2048 + jj*1024}")

    def step(ks):
        r = hf + 8 * (ks % RING)
        for j in range(4):
            n, t = j >> 1, j & 1
            A(f"{MF} {v(acc+16*j,16)}, {v(wf+8*(ks%2)+4*n,4)}, {a_(r+4*t,4)}, {'0' if (ks == 0 and j) else v(acc+16*j,16)}")
            if j == 0 and ks + 1 < NS:
                wread(ks + 1)

    wread(0)
    stamp(A, 1)
    for ks in range(NS):
        if ks == NS - 2:
            A.wait(vm=0, lg=0)
            A(f"s_cmp_eq_u32 s{sW}, 3")
            A(f"s_cbranch_scc1 L_dskip_{name}")
            A.cond_begin()
        step(ks)
        if ks + LA < NS:
            issue(ks + LA)
    A.cond_end()
    A.label(f"L_dskip_{name}")
    A.barrier()
    stamp(A, 2)
    A(f"v_and_b32 v{t0}, 31, v0")
    A(f"v_lshrrev_b32 v{t1}, 5, v0")
    A(f"v_and_b32 v{t2}, 7, v0")
    A(f"v_xor_b32 v{t1}, v{t1}, v{t2}")
    A(f"v_lshlrev_b32 v{t1}, 4, v{t1}")
    A(f"v_lshl_add_u32 v{t1}, v{t0}, 8, v{t1}")
    A(f"s_lshl_b32 s{sT}, s{sW}, 14")
    A(f"s_and_b32 s{sU}, s{sW}, 1")
    A(f"s_lshl_b32 s{sU}, s{sU}, 13")
    A(f"s_add_u32 s{sT}, s{sT}, s{sU}")
    A(f"s_lshl_b32 s{sU}, s{sN}, 7")
    A(f"s_add_u32 s{sT}, s{sT}, s{sU}")
    A(f"v_add_u32 v{t1}, s{sT}, v{t1}")
    wa = wf
    for j in range(4):
        for g in range(4):
            x = ((j & 1) << 13) | ((j >> 1) << 7) | (g << 5)
            A(f"v_xor_b32 v{wa+4*j+g}, {x}, v{t1}")
    for j in range(4):
        for g in range(4):
            A(f"ds_write_b128 v{wa+4*j+g}, {v(acc+16*j+4*g,4)}")
    A.barrier()
    A(f"v_lshrrev_b32 v{t0}, 3, v0")
    A(f"v_and_b32 v{t1}, 7, v0")
    A(f"v_lshlrev_b32 v{t2}, 1, v{t1}")
    A(f"v_xor_b32 v{t2}, v{t2}, v{t0}")
    A(f"v_lshlrev_b32 v{t2}, 4, v{t2}")
    A(f"v_lshl_add_u32 v{t2}, v{t0}, 8, v{t2}")
    A(f"s_lshl_b32 s{sT}, s{sW}, 12")
    A(f"v_add_u32 v{t2}, s{sT}, v{t2}")
    A(f"v_xor_b32 v{wa}, 16, v{t2}")
    for ps in range(2):
        for src in range(4):
            A(f"ds_read_b128 {v(acc+32*ps+8*src,4)}, v{t2} offset:{src*16384 + ps*2048}")
            A(f"ds_read_b128 {v(acc+32*ps+8*src+4,4)}, v{wa} offset:{src*16384 + ps*2048}")
    A(f"v_lshlrev_b32 v{t1}, 4, v{t1}")
    A(f"v_lshl_add_u32 v{t1}, v{t0}, 10, v{t1}")
    A(f"s_lshl_b32 s{sT}, s{S_RB}, 16")
    A(f"s_lshl_b32 s{sU}, s{sW}, 14")
    A(f"s_add_u32 s{sT}, s{sT}, s{sU}")
    A(f"s_lshl_b32 s{sU}, s{S_C}, 7")
    A(f"s_add_u32 s{sT}, s{sT}, s{sU}")
    for ps in range(2):
        b = acc + 32 * ps
        for src in range(1, 4):
            for p in range(4):
                A(f"v_pk_add_f32 {v(b+2*p,2)}, {v(b+2*p,2)}, {v(b+8*src+2*p,2)}")
        for p in range(4):
            A(f"v_cvt_pk_bf16_f32 v{hr+4*ps+p}, v{b+2*p}, v{b+2*p+1}")
        A(f"buffer_store_dwordx4 {v(hr+4*ps,4)}, v{t1}, {s(S_OUT,4)}, s{sT} offen")
        A(f"s_add_u32 s{sT}, s{sT}, 8192")


def gen(extra_empty=0):
    A = Asm()
    A.raw(HDR.rstrip())
    A.raw("; @launch kernel=z_kernel grid=(9,1,1) block=(256,1,1) lds=0")
    A.raw("; @launch kernel=a_kernel grid=(256,1,1) block=(256,1,1) lds=163840")
    A.raw("; @launch kernel=b_kernel grid=(256,1,1) block=(256,1,1) lds=114688")
    A.raw("; @launch kernel=c_kernel grid=(256,1,1) block=(256,1,1) lds=102400")
    A.raw("; @launch kernel=d_kernel grid=(256,1,1) block=(256,1,1) lds=131072")
    for k in range(extra_empty):
        A.raw("; @launch kernel=e_kernel grid=(256,1,1) block=(256,1,1) lds=0")
    A.raw('.amdgcn_target "amdgcn-amd-amdhsa--gfx950"\n.text')
    kernel_Z(A)
    for name, need, fn in (("a_kernel", [S_X, S_WQKV, S_WS], lambda V, G: phase_A(A, V, G)),
                           ("b_kernel", [S_X, S_WO, S_WS], lambda V, G: phase_B(A, V, G)),
                           ("c_kernel", [S_W1, S_B1, S_WS], lambda V, G: phase_C(A, V, G, "c_kernel")),
                           ("d_kernel", [S_W2, S_B2, S_OUT, S_WS], lambda V, G: phase_D(A, V, G, "d_kernel"))):
        V, G = Alloc("v", 2, 255), Alloc("a", 0, 255)
        prologue(A, name, need)
        fn(V, G)
        stamp_flush(A, "abcd".index(name[0]), 3)
        epilogue(A, name, V.peak, G.peak)
    if extra_empty:
        prologue(A, "e_kernel", [])
        epilogue(A, "e_kernel", 8, 0)
    return A.text()


if __name__ == "__main__":
    out = sys.argv[1] if len(sys.argv) > 1 else "cdna_kernels/" + NAME + ".s"
    n = int(sys.argv[2]) if len(sys.argv) > 2 else 0
    STAMP = len(sys.argv) > 3
    open(out, "w").write(gen(n))
    print("wrote", out)
```

```python
import sys, gen1
from asmgen import *
def variant(koff, base, n, last=False):
    t = gen1.gen(0)
    line = "; @launch kernel=p_kernel grid=(1,1,1) block=(64,1,1) lds=0\n"
    if last:
        t = t.replace('.amdgcn_target', line + '.amdgcn_target')
    else:
        t = t.replace("; @launch kernel=z_kernel", line + "; @launch kernel=z_kernel")
    A = Asm()
    A.raw(".globl p_kernel\n.p2align 8\n.type p_kernel,@function\np_kernel:")
    A("s_cmp_ge_u32 s2, 1\ns_cbranch_scc1 L_end_p_kernel")
    A(f"s_load_dwordx2 s[8:9], s[0:1], {koff}")
    A(f"s_mov_b32 s10, {base + (1<<20)}\ns_mov_b32 s11, 0x20000\ns_mov_b32 s4, {base}\ns_mov_b32 s5, 0\nv_mov_b32 v1, 0")
    A("s_waitcnt lgkmcnt(0)")
    if n:
        A.label("L_p")
        A("buffer_load_dword v2, v1, s[8:11], s4 offen\ns_waitcnt vmcnt(0)\ns_add_u32 s4, s4, 4224\ns_add_u32 s5, s5, 1")
        A(f"s_cmp_lt_u32 s5, {n}\ns_cbranch_scc1 L_p")
    gen1.epilogue(A, "p_kernel", 8, 0)
    return t + A.text()
open("var/p_none.s", "w").write(variant(24, 0, 0))
open("var/p_bx.s", "w").write(variant(24, 0, 100))
open("var/p_x.s", "w").write(variant(0, 0, 100))
open("var/p_w2.s", "w").write(variant(48, 0, 100))
open("var/p_ws0.s", "w").write(variant(80, 20<<20, 100))
open("var/p_ws250.s", "w").write(variant(80, 250<<20, 100))
```

```python
import sys, gen1
from asmgen import *
def variant(n, base=32<<20):
    t = gen1.gen(0)
    line = "; @launch kernel=p_kernel grid=(256,1,1) block=(256,1,1) lds=0\n"
    t = t.replace("; @launch kernel=z_kernel", line + "; @launch kernel=z_kernel")
    A = Asm()
    A.raw(".globl p_kernel\n.p2align 8\n.type p_kernel,@function\np_kernel:")
    A("s_cmp_ge_u32 s2, 256\ns_cbranch_scc1 L_end_p_kernel")
    A(f"s_load_dwordx2 s[8:9], s[0:1], 80")
    A(f"s_mov_b32 s10, {200<<20}\ns_mov_b32 s11, 0x20000\ns_mul_i32 s4, s2, {n*4096}\ns_add_u32 s4, s4, {base}\nv_lshlrev_b32 v1, 4, v0")
    A("s_waitcnt lgkmcnt(0)")
    for i in range(n):
        A(f"buffer_load_dwordx4 v[{4+4*(i%48)}:{7+4*(i%48)}], v1, s[8:11], s4 offen\ns_add_u32 s4, s4, 4096")
    A("s_waitcnt vmcnt(0)")
    gen1.epilogue(A, "p_kernel", 200, 0)
    return t + A.text()
for n in (0, 16, 48, 96):
    open(f"var/ps_{n}.s", "w").write(variant(n))
```

```python
import sys, gen1
from asmgen import *
def variant(ticks):
    t = gen1.gen(0)
    t = t.replace("; @launch kernel=z_kernel", "; @launch kernel=p0_kernel grid=(1,1,1) block=(64,1,1) lds=0\n; @launch kernel=z_kernel")
    t = t.replace('.amdgcn_target', "; @launch kernel=p1_kernel grid=(1,1,1) block=(64,1,1) lds=0\n" + '.amdgcn_target')
    A = Asm()
    A.raw(".globl p0_kernel\n.p2align 8\n.type p0_kernel,@function\np0_kernel:")
    A("s_memrealtime s[20:21]")
    A("s_cmp_ge_u32 s2, 1\ns_cbranch_scc1 L_end_p0_kernel")
    A(f"s_load_dwordx2 s[8:9], s[0:1], 80")
    A(f"s_mov_b32 s10, {200<<20}\ns_mov_b32 s11, 0x20000\ns_mov_b32 s4, {100<<20}\nv_mov_b32 v1, 0")
    A("s_waitcnt lgkmcnt(0)\nv_mov_b32 v2, s20")
    A("buffer_store_dword v2, v1, s[8:11], s4 offen")
    gen1.epilogue(A, "p0_kernel", 8, 0)
    A.raw(".globl p1_kernel\n.p2align 8\n.type p1_kernel,@function\np1_kernel:")
    A("s_cmp_ge_u32 s2, 1\ns_cbranch_scc1 L_end_p1_kernel")
    A(f"s_load_dwordx2 s[8:9], s[0:1], 80")
    A(f"s_mov_b32 s10, {200<<20}\ns_mov_b32 s11, 0x20000\ns_mov_b32 s4, {100<<20}\nv_mov_b32 v1, 0")
    A("s_waitcnt lgkmcnt(0)")
    A("buffer_load_dword v2, v1, s[8:11], s4 offen\ns_waitcnt vmcnt(0)\nv_readfirstlane_b32 s5, v2\ns_mov_b32 s6, 0")
    A.label("L_sp")
    A("s_memrealtime s[20:21]\ns_waitcnt lgkmcnt(0)\ns_sub_u32 s20, s20, s5\ns_add_u32 s6, s6, 1")
    A(f"s_cmp_ge_u32 s20, {ticks}\ns_cbranch_scc1 L_end_p1_kernel\ns_cmp_lt_u32 s6, 20000\ns_cbranch_scc1 L_sp")
    gen1.epilogue(A, "p1_kernel", 8, 0)
    return t + A.text()
open("var/pf_100.s", "w").write(variant(10000))
open("var/pf_80.s", "w").write(variant(8000))
```
